```python
import torch

def _softmax(x, axis=-1):
    return torch.softmax(x, dim=axis)
def _gelu(x):
    return torch.nn.functional.gelu(x, approximate="tanh")
def _silu(x):
    return torch.nn.functional.silu(x)
def _sigmoid(x):
    return torch.sigmoid(x)
def _layernorm(x, axis=-1, eps=1e-5):
    m = x.mean(dim=axis, keepdim=True)
    v = x.var(dim=axis, keepdim=True, unbiased=False)
    return (x - m) / torch.sqrt(v + eps)
def _scatter_add(tgt, idx, src, axis=0):
    return tgt.clone().index_add_(axis, idx, src)
def _segment_sum(src, seg, n):
    out = torch.zeros((n,) + src.shape[1:], dtype=src.dtype)
    return out.index_add_(0, seg, src)
def _pad(x, pw):
    flat = tuple(v for pair in reversed(pw) for v in pair)
    return torch.nn.functional.pad(x, flat)

kernel_name = 'concat_heads__ssm_conv_h3__spectral_fnet__prompt'

def setup_inputs():

    _w = (lambda a: (lambda t: t.to(torch.bfloat16) if t.is_floating_point() else t)(torch.as_tensor(a)))
    def _A_setup():
        B, S, D = 1, 2048, 512
        ks = 4
        return {
            "q": _w((lambda *s: torch.randn(*s, dtype=torch.bfloat16) * 0.05)(B, S, D)),
            "k": _w((lambda *s: torch.randn(*s, dtype=torch.bfloat16) * 3.2)(B, S, D)),
            "v": _w((lambda *s: torch.randn(*s, dtype=torch.bfloat16) * 3.2)(B, S, D)),
            "shift_k": _w((lambda *s: torch.randn(*s, dtype=torch.bfloat16) * 3.2)(D, ks) * 0.5),
            "ssm_k": _w((lambda *s: torch.randn(*s, dtype=torch.bfloat16) * 3.2)(D, S) * (1.0 / S ** 0.5)),
            "ssm_D": _w((lambda *s: torch.randn(*s, dtype=torch.bfloat16) * 3.2)(D)),
        }
    _A_in = _A_setup()

    def _B_setup():
        B, S, D = 1, 2048, 512
        ns = torch.arange(S)[:, None] * torch.arange(S)[None, :]
        nd = torch.arange(D)[:, None] * torch.arange(D)[None, :]
        Ws_re = torch.cos(-2.0 * torch.pi * ns / S).to(float)
        Ws_im = torch.sin(-2.0 * torch.pi * ns / S).to(float)
        Wd_re = torch.cos(-2.0 * torch.pi * nd / D).to(float)
        Wd_im = torch.sin(-2.0 * torch.pi * nd / D).to(float)
        return {
            "x": _w((lambda *s: torch.randn(*s, dtype=torch.bfloat16) * 0.05)(B, S, D)),
            "dft_seq_re": _w(Ws_re),
            "dft_seq_im": _w(Ws_im),
            "dft_hid_re": _w(Wd_re),
            "dft_hid_im": _w(Wd_im),
        }
    _B_in = _B_setup()

    return {
        "A_q": _A_in["q"],
        "A_k": _A_in["k"],
        "A_v": _A_in["v"],
        "A_shift_k": _A_in["shift_k"],
        "A_ssm_k": _A_in["ssm_k"],
        "A_ssm_D": _A_in["ssm_D"],
        "B_x": _B_in["x"],
        "B_dft_seq_re": _B_in["dft_seq_re"],
        "B_dft_seq_im": _B_in["dft_seq_im"],
        "B_dft_hid_re": _B_in["dft_hid_re"],
        "B_dft_hid_im": _B_in["dft_hid_im"],
    }

def reference(A_q, A_k, A_v, A_shift_k, A_ssm_k, A_ssm_D, B_x, B_dft_seq_re, B_dft_seq_im, B_dft_hid_re, B_dft_hid_im):
    def _A_ref(q, k, v, shift_k, ssm_k, ssm_D):
        B, S, D = q.shape
        ks = shift_k.shape[-1]
        k_pad = _pad(k, ((0, 0), (ks - 1, 0), (0, 0)))
        k_shift = torch.zeros_like(k)
        for t in range(ks):
            k_shift = k_shift + k_pad[:, t:t + S, :] * shift_k[:, ks - 1 - t][None, None, :]
        kv = k_shift * v
        L = 2 * S
        kv_pad = _pad(kv, ((0, 0), (0, S), (0, 0)))
        kf_pad = _pad(ssm_k, ((0, 0), (0, S)))
        kv_f = (lambda x, axes=(-2,-1): torch.fft.rfft2(x.float(), dim=axes))(kv_pad[:, None, :, :], axes=(1, 2))
        kf_f = (lambda x, axes=(-2,-1): torch.fft.rfft2(x.float(), dim=axes))(kf_pad[:, None, :], axes=(1, 2))
        kf_f = (lambda x, *d: x.permute(*d))(kf_f, 1, 2, 0)
        y_f = kv_f * kf_f[None, :, :, :]
        y = (lambda x, s, axes=(-2,-1): torch.fft.irfft2(x, s=s, dim=axes).to(torch.bfloat16))(y_f, (1, L), axes=(1, 2))[:, 0, :S, :]
        y = y + kv * ssm_D[None, None, :]
        return q * y

    def _B_ref(x, dft_seq_re, dft_seq_im, dft_hid_re, dft_hid_im):
        a = torch.einsum("bsd,ed->bse", x, dft_hid_re)
        b = torch.einsum("bsd,ed->bse", x, dft_hid_im)
        y = torch.einsum("ts,bse->bte", dft_seq_re, a) - torch.einsum("ts,bse->bte", dft_seq_im, b)
        return y

    a = _A_ref(A_q, A_k, A_v, A_shift_k, A_ssm_k, A_ssm_D)
    b = _B_ref(B_x, B_dft_seq_re, B_dft_seq_im, B_dft_hid_re, B_dft_hid_im)
    return torch.concatenate([a, b], axis=-1)
```

```python
import re

def vr(base, n=1):
    return f"v{base}" if n == 1 else f"v[{base}:{base+n-1}]"
def sr(base, n=1):
    return f"s{base}" if n == 1 else f"s[{base}:{base+n-1}]"

_REG = re.compile(r"(?<![\w.])(-?)(?:abs\()?([vsa])(?:(\d+)|\[(\d+):(\d+)\])")

def regs_of(tok):
    out = []
    tok = tok.strip()
    if tok in ("vcc", "exec", "m0"):
        return [(tok, 0)]
    for m in _REG.finditer(tok):
        k = m.group(2)
        if m.group(3) is not None:
            out.append((k, int(m.group(3))))
        else:
            out += [(k, i) for i in range(int(m.group(4)), int(m.group(5)) + 1)]
    return out

TRANS = ("v_cos_f32", "v_sin_f32", "v_rcp_f32", "v_exp_f32", "v_log_f32", "v_rsq_f32", "v_sqrt_f32")

class Ins:
    def __init__(self, text):
        self.text = text
        t = text.split(";")[0].strip()
        self.label = t.endswith(":")
        self.directive = t.startswith(".") or t == ""
        self.op = t.split()[0] if t and not self.label else ""
        rest = t[len(self.op):].strip() if self.op else ""
        ops, depth, cur = [], 0, ""
        for ch in rest:
            if ch in "[(": depth += 1
            if ch in "])": depth -= 1
            if ch == "," and depth == 0:
                ops.append(cur); cur = ""
            else:
                cur += ch
        if cur.strip(): ops.append(cur)
        if ops:
            ops[-1] = ops[-1].strip().split(" ")[0]
        self.ops = [o.strip() for o in ops]
        op = self.op
        self.mfma = op.startswith("v_mfma")
        self.valu = op.startswith("v_") and not self.mfma
        self.trans = op.replace("_e32", "").replace("_e64", "") in TRANS
        self.ds = op.startswith("ds_")
        self.vmem = op.startswith(("buffer_", "global_"))
        self.salu = op.startswith("s_")
        self.lds_dma = self.vmem and (" lds" in t or "load_lds" in op)
        self.w, self.r = set(), set()
        R = lambda i: set(regs_of(self.ops[i])) if i < len(self.ops) else set()
        allr = lambda a: set().union(*[R(i) for i in range(a, len(self.ops))]) if len(self.ops) > a else set()
        self.srcc = set(); self.ab = set(); self.stdata = set()
        if self.mfma:
            self.w = R(0); self.r = allr(1); self.srcc = R(3); self.ab = R(1) | R(2)
            self.passes = 8 if "32x32" in op else 4
        elif self.valu:
            self.w = R(0); self.r = allr(1)
            if op.startswith(("v_fmac", "v_dot2c", "v_pk_fmac")): self.r |= R(0)
            if op.startswith("v_permlane") and "swap" in op:
                self.w = R(0) | R(1); self.r = R(0) | R(1)
            if op.startswith("v_cmpx"): self.w |= {("exec", 0)}
            if op.startswith(("v_add_co", "v_addc_co", "v_sub_co")): self.w |= R(1)
        elif self.ds:
            if op.startswith(("ds_read", "ds_bpermute", "ds_permute", "ds_swizzle")):
                self.w = R(0); self.r = allr(1)
            else:
                self.r = allr(0)
        elif self.vmem:
            if self.lds_dma:
                self.r = allr(0) | {("m0", 0)}
            elif "load" in op:
                self.w = R(0); self.r = allr(1)
            else:
                self.r = allr(0)
                if "x4" in op or "x3" in op:
                    self.stdata = R(0) if op.startswith("buffer_") else R(1)
        elif self.salu:
            if op.startswith(("s_cmp", "s_cbranch", "s_branch", "s_waitcnt", "s_barrier", "s_nop", "s_sleep", "s_setprio", "s_endpgm", "s_bitcmp")):
                self.r = allr(0)
            else:
                self.w = R(0); self.r = allr(1)
                if "saveexec" in op: self.w |= {("exec", 0)}
    def states(self):
        if self.label or self.directive: return 0
        if self.op == "s_nop": return int(self.ops[0], 0) + 1
        return 1

def need(p, c):
    n = 0
    pv = {x for x in p.w if x[0] in "va" and len(x[0]) == 1}
    ps = {x for x in p.w if x[0] == "s" or x[0] == "vcc"}
    if p.valu:
        if c.mfma and (pv & c.r): n = max(n, 2)
        if c.op.startswith(("v_readfirstlane", "v_readlane")) and (pv & c.r): n = max(n, 1)
        if c.op.startswith("v_permlane") and (pv & c.r): n = max(n, 2)
        if p.trans and c.valu and (pv & c.r): n = max(n, 1)
        if p.trans and (c.vmem or c.ds) and (pv & c.r): n = max(n, 1)
        if c.vmem and (ps & c.r): n = max(n, 5)
        if c.valu and (ps & c.r): n = max(n, 2)
        if c.valu and c.op.startswith("v_cndmask") and ("vcc", 0) in ps: n = max(n, 2)
        if c.salu and (ps & c.r): n = max(n, 1)
        if ("exec", 0) in p.w and c.mfma: n = max(n, 4)
        if "dpp" in c.text and (pv & c.r): n = max(n, 2)
        if ("op_sel" in p.text and not p.op.startswith("v_pk")) and c.valu and (pv & (c.r | c.w)): n = max(n, 1)
    if p.mfma:
        big = 12 if p.passes == 8 else 8
        if c.mfma:
            if p.w & c.ab: n = max(n, big)
            if p.w & c.srcc:
                if not (p.w == c.srcc and p.passes == c.passes): n = max(n, big - 2)
            elif p.w & c.w: n = max(n, big)
        else:
            if p.w & (c.r | c.w): n = max(n, big)
            if c.valu and (p.srcc & c.w): n = max(n, 7 if p.passes == 8 else 3)
    if p.stdata and (p.stdata & c.w): n = max(n, 2)
    if p.salu and ("m0", 0) in p.w and c.lds_dma: n = max(n, 1)
    return n

class Asm:
    def __init__(self):
        self.ins = []
        self.pads = 0
    def __call__(self, text):
        for line in text.split("\n"):
            line = line.rstrip()
            if line.strip() == "": continue
            self.add(line.strip())
    def add(self, line):
        c = Ins(line)
        if not (c.label or c.directive):
            dist, pad = 0, 0
            for p in reversed(self.ins):
                if dist >= 12: break
                if not (p.label or p.directive):
                    pad = max(pad, need(p, c) - dist)
                dist += p.states()
            if pad > 0:
                self.pads += pad
                self.ins.append(Ins(f"s_nop {pad-1}"))
        self.ins.append(c)
    def text(self):
        return "\n".join((i.text if i.label or i.directive else "    " + i.text) for i in self.ins) + "\n"

class Lgkm:
    def __init__(self, a):
        self.a = a; self.n = 0; self.done = 0
    def issue(self, text):
        self.a(text); self.n += 1
        return self.n
    def wait(self, tok):
        if tok <= self.done: return
        k = min(self.n - tok, 14)
        self.a(f"s_waitcnt lgkmcnt({k})")
        self.done = self.n - k
```

```python
import sys, struct
from asmlib import *

KN = "concat_heads__ssm_conv_h3__spectral_fnet__prompt_kernel"
def f32(x): return "0x%08x" % struct.unpack("<I", struct.pack("<f", x))[0]

class Cfg:
    stamps = False
    nt = "nt"
    zfs = 7
    timeout = 64
    force_slow = False
    out_flag = ""
    conv_prio = 0
    fnet_prio = 0

KVF, KVS, YS, Z1W = 0x000000, 0x200000, 0x400000, 0x600000
ZF = 0x800000
CF = 0x840000
CF_KV, CF_Y, CF_SLOW, CF_HELLO, CF_EPOCH = 0, 512, 1024, 2048, 3072
FE = 0x850000
STAMP = 0x4000000
HC, HCS, HCH = 0, 4160, 16640
XI, XIS = 33280, 4608
PX = 42496
LDS_BYTES = 59392
XT, ZL = 0, 8192
S0, S1 = (0, 3, 4, 7), (1, 2, 5, 6)

def gen(cfg):
    a = Asm()
    NT = cfg.nt
    nst = [0]
    def stamp(i):
        if cfg.stamps: a(f"s_memrealtime s[{60+2*i}:{61+2*i}]")
    def stamp_out(n):
        if not cfg.stamps: return
        a("s_waitcnt vmcnt(0)")
        stamp(n)
        a("s_waitcnt lgkmcnt(0)")
        for i in range(16):
            a(f"v_mov_b32 v{40+i}, s{60+2*i}" if i <= n else f"v_mov_b32 v{40+i}, 0")
        a(f"""
        s_lshl_b32 s40, s2, 2
        s_add_u32 s40, s40, s26
        s_lshl_b32 s40, s40, 6
        s_add_u32 s40, s40, {STAMP}
        v_mov_b32 v1, s40
        s_mov_b64 exec, 1
        global_store_dwordx4 v1, v[40:43], s[22:23]
        global_store_dwordx4 v1, v[44:47], s[22:23] offset:16
        global_store_dwordx4 v1, v[48:51], s[22:23] offset:32
        global_store_dwordx4 v1, v[52:55], s[22:23] offset:48
        """)
    stamp(0)
    a(f"""
    s_load_dwordx16 s[4:19], s[0:1], 0
    s_load_dwordx2 s[22:23], s[0:1], 104
    s_load_dwordx2 s[20:21], s[0:1], 88
    s_cmp_ge_u32 s2, 512
    s_cbranch_scc1 L_exit
    s_getpc_b64 s[30:31]
    L_pc:
    v_lshlrev_b32 v1, 7, v0
    v_min_u32 v1, L_code_end-L_pc-4, v1
    global_load_dword v255, v1, s[30:31] {NT}
    s_mov_b32 s58, 0
    s_and_b32 s24, s2, 7
    s_bfe_u32 s25, s2, 0x50003
    v_lshrrev_b32 v2, 6, v0
    v_and_b32 v1, 15, v0
    v_readfirstlane_b32 s26, v2
    s_cmp_ge_u32 s2, 256
    s_cbranch_scc0 L_conv
    """)
    a(f"""
    s_and_b32 s40, s25, 1
    s_lshl1_add_u32 s40, s24, s40
    s_lshr_b32 s41, s25, 1
    s_lshl_b32 s42, s41, 10
    s_lshl_b32 s43, s40, 6
    s_add_u32 s42, s42, s43
    v_bfe_u32 v3, v0, 2, 4
    v_lshl_add_u32 v3, v2, 5, v3
    v_lshlrev_b32 v3, 14, v3
    v_and_b32 v4, 3, v0
    v_lshl_add_u32 v3, v4, 4, v3
    v_add_u32 v3, s42, v3
    v_add_u32 v4, 0x40000, v3
    s_lshl_b32 s43, s26, 11
    s_mov_b32 m0, s43
    s_waitcnt lgkmcnt(0)
    global_load_lds_dwordx4 v3, s[16:17] {NT}
    s_add_u32 m0, s43, 1024
    s_add_u32 s44, s22, {FE}
    s_addc_u32 s45, s23, 0
    global_load_lds_dwordx4 v4, s[16:17] {NT}
    s_load_dword s27, s[44:45], 0
    s_branch L_fnet
    """)
    K0, V0, W0 = 128, 140, 148
    KVP, Q0, DD = 16, 24, 32
    ACC, BR, NB, AF = 36, 68, 15, 128
    a(f"""
    L_conv:
    v_bfe_u32 v3, v0, 4, 3
    v_lshrrev_b32 v4, 7, v0
    v_lshl_add_u32 v4, v4, 4, v1
    s_lshl_b32 s40, s25, 16
    s_lshl_b32 s41, s24, 7
    s_add_u32 s40, s40, s41
    s_add_u32 s40, s40, 4096
    v_lshlrev_b32 v5, 13, v3
    v_lshl_add_u32 v5, v4, 2, v5
    v_add_u32 v5, s40, v5
    v_add_u32 v6, 0xffffe400, v5
    v_lshl_add_u32 v7, v4, 2, s41
    v_lshlrev_b32 v8, 2, v7
    s_mov_b32 s34, 0x200000
    s_mov_b32 s35, 0x20000
    s_waitcnt lgkmcnt(0)
    s_mov_b32 s32, s6
    s_mov_b32 s33, s7
    global_load_dwordx4 {vr(W0,4)}, v8, s[10:11]
    """)
    stamp(1)
    for j in range(3):
        a(f"buffer_load_dword v{K0+j}, v6, s[32:35], 0 offen offset:{1024*j} {NT}")
    for j in range(8):
        a(f"global_load_dword v{K0+3+j}, v5, s[6:7] offset:{1024*j-4096} {NT}")
    for j in range(8):
        a(f"global_load_dword v{V0+j}, v5, s[8:9] offset:{1024*j-4096} {NT}")
    if cfg.conv_prio: a(f"s_setprio {cfg.conv_prio}")
    a(f"""
    s_lshl_b32 s42, s24, 12
    s_add_u32 s42, s42, {CF}
    s_add_u32 s44, s22, s42
    s_addc_u32 s45, s23, 0
    s_load_dword s27, s[44:45], {CF_EPOCH}
    s_getreg_b32 s28, hwreg(HW_REG_XCC_ID, 0, 4)
    s_mov_b32 s36, s12
    s_mov_b32 s37, s13
    s_mov_b32 s38, 0x200000
    s_mov_b32 s39, 0x20000
    v_mov_b64 v[36:37], 0
    v_mov_b64 v[38:39], 0
    v_bfe_u32 v9, v0, 5, 1
    v_mul_u32_u24 v9, {XIS}, v9
    v_and_b32 v10, 31, v0
    v_lshl_add_u32 v9, v10, 4, v9
    v_add_u32 v9, {XI}, v9
    v_lshrrev_b32 v10, 1, v1
    v_mul_u32_u24 v10, {HCS}, v10
    v_and_b32 v11, 1, v0
    v_lshl_add_u32 v10, v11, 4, v10
    v_cmp_gt_u32 vcc, 64, v0
    v_cndmask_b32 v9, v10, v9, vcc
    ds_write_b128 v9, v[36:39]
    """)
    a(f"""
    s_lshl_b32 s40, s24, 18
    s_lshl_b32 s41, s25, 9
    s_add_u32 s41, s41, s40
    v_lshrrev_b32 v9, 1, v4
    v_lshlrev_b32 v9, 14, v9
    v_lshl_add_u32 v9, v11, 6, v9
    v_lshrrev_b32 v12, 2, v3
    v_lshl_add_u32 v9, v12, 8, v9
    v_and_b32 v12, 3, v3
    v_lshl_add_u32 v9, v12, 4, v9
    v_add_u32 v9, s41, v9
    v_lshlrev_b32 v10, 4, v0
    v_add_u32 v11, -8, v10
    s_lshl_b32 s46, s25, 13
    s_add_u32 s46, s46, s40
    s_add_u32 s47, s46, 4096
    v_lshrrev_b32 v12, 2, v0
    v_lshl_add_u32 v12, v12, 7, s46
    v_and_b32 v13, 7, v0
    v_lshlrev_b32 v13, 7, v13
    """)
    HD, HE = 72, 80
    a(f"""
    s_waitcnt vmcnt(19) lgkmcnt(0)
    s_barrier
    """)
    stamp(2)
    a(f"""
    buffer_load_dwordx4 {vr(HD,4)}, v10, s[36:39], s46 offen {NT}
    buffer_load_dwordx4 {vr(HD+4,4)}, v10, s[36:39], s47 offen {NT}
    buffer_load_dwordx2 {vr(HE,2)}, v11, s[36:39], s46 offen {NT}
    buffer_load_dwordx2 {vr(HE+2,2)}, v11, s[36:39], s47 offen {NT}
    global_load_dword v254, v12, s[22:23] nt
    global_load_dword v253, v13, s[44:45] nt
    s_mul_i32 s27, s27, 0x9e3779b1
    s_add_u32 s27, s27, 0x7f4a7c15
    s_xor_b32 s29, s27, s28
    """)
    if cfg.force_slow:
        a("s_and_b32 s28, s25, 1\ns_xor_b32 s29, s27, s28")
    WP, KF, VF, AC = 152, 160, 184, 200
    for j in range(4):
        for ch in range(2):
            src = W0 + 2*ch + (j >> 1)
            if j & 1: a(f"v_and_b32 v{WP+2*j+ch}, 0xffff0000, v{src}")
            else:     a(f"v_lshlrev_b32 v{WP+2*j+ch}, 16, v{src}")
    a("s_waitcnt vmcnt(14)")
    stamp(3)
    for n in range(11):
        a(f"v_lshlrev_b32 v{KF+2*n}, 16, v{K0+n}\nv_and_b32 v{KF+2*n+1}, 0xffff0000, v{K0+n}")
    for j in (3, 2, 1, 0):
        for n in range(8):
            k = vr(KF + 2*(n + 3 - j), 2); w = vr(WP + 2*j, 2); d = vr(AC + 2*n, 2)
            if j == 3: a(f"v_pk_mul_f32 {d}, {k}, {w}")
            else:      a(f"v_pk_fma_f32 {d}, {k}, {w}, {d}")
    a("s_waitcnt vmcnt(6)")
    for n in range(8):
        a(f"v_lshlrev_b32 v{VF+2*n}, 16, v{V0+n}\nv_and_b32 v{VF+2*n+1}, 0xffff0000, v{V0+n}")
    for n in range(8):
        a(f"v_pk_mul_f32 {vr(AC+2*n,2)}, {vr(AC+2*n,2)}, {vr(VF+2*n,2)}")
    for ch in range(2):
        for q in range(4):
            a(f"v_cvt_pk_bf16_f32 v{KVP+4*ch+q}, v{AC+2*(7-2*q)+ch}, v{AC+2*(6-2*q)+ch}")
        a(f"global_store_dwordx4 v9, {vr(KVP+4*ch,4)}, s[22:23] offset:{128*ch}")
    stamp(4)
    T = 84
    a(f"""
    v_add_u32 v11, {HC+32}, v10
    s_waitcnt vmcnt(4)
    """)
    for ch in range(2):
        d, e = HD + 4*ch, HE + 2*ch
        w = [e, e+1, d, d+1, d+2, d+3]
        t = T + 12*ch
        a(f"ds_write_b128 v11, {vr(d,4)} offset:{ch*HCH}")
        for i in range(4): a(f"v_alignbyte_b32 v{t+i}, v{w[i+2]}, v{w[i+1]}, 2")
        a(f"ds_write_b128 v11, {vr(t,4)} offset:{ch*HCH+HCS}")
        for i in range(4): a(f"v_mov_b32 v{t+4+i}, v{w[i+1]}")
        a(f"ds_write_b128 v11, {vr(t+4,4)} offset:{ch*HCH+2*HCS}")
        for i in range(4): a(f"v_alignbyte_b32 v{t+8+i}, v{w[i+1]}, v{w[i]}, 2")
        a(f"ds_write_b128 v11, {vr(t+8,4)} offset:{ch*HCH+3*HCS}")
    a(f"""
    s_lshr_b32 s48, s26, 1
    s_and_b32 s49, s26, 1
    s_lshl_b32 s40, s48, 8
    s_lshl_b32 s41, s25, 3
    s_add_u32 s40, s40, s41
    s_lshl2_add_u32 s40, s49, s40
    v_mov_b32 v10, s40
    v_mov_b32 v33, s29
    s_lshr_b32 s41, s25, 4
    s_lshl_b32 s41, s41, 8
    v_and_b32 v2, 63, v0
    v_lshl_add_u32 v11, v2, 2, s41
    s_mov_b64 exec, 1
    s_waitcnt vmcnt(0)
    global_store_dword v10, v33, s[44:45] offset:{CF_KV}
    s_mov_b64 exec, -1
    """)
    stamp(5)
    a(f"""
    v_bfe_u32 v3, v0, 4, 2
    v_and_b32 v12, 3, v0
    v_sub_u32 v12, 3, v12
    v_mul_u32_u24 v12, {HCS}, v12
    v_or_b32 v13, 3, v1
    v_lshl_add_u32 v12, v13, 1, v12
    v_lshl_add_u32 v12, v3, 4, v12
    s_mul_i32 s40, s48, {HCH}
    s_lshl_b32 s41, s49, 8
    s_add_u32 s40, s40, s41
    s_add_u32 s40, s40, {HC+2}
    v_add_u32 v12, s40, v12
    s_waitcnt lgkmcnt(0)
    s_barrier
    global_load_dword v34, v11, s[44:45] offset:{CF_KV} sc1
    """)
    for u in range(8):
        for rr in range(4):
            f = AF + 4*(4*u + rr)
            a(f"ds_read_b64 {vr(f,2)}, v12 offset:{512*u+64*rr}")
            a(f"ds_read_b64 {vr(f+2,2)}, v12 offset:{512*u+64*rr+8}")
    a(f"""
    s_mul_i32 s40, s48, {XIS}
    s_add_u32 s50, s40, {XI+512}
    s_sub_u32 s40, s50, s41
    s_sub_u32 s40, s40, 176
    v_lshlrev_b32 v13, 5, v1
    v_lshlrev_b32 v14, 4, v3
    v_sub_u32 v13, v13, v14
    v_add_u32 v13, s40, v13
    s_lshl_b32 s40, s49, 11
    s_add_u32 s50, s50, s40
    s_lshl_b32 s40, s24, 18
    s_lshr_b32 s41, s25, 1
    s_lshl_b32 s41, s41, 14
    s_add_u32 s40, s40, s41
    s_lshl_b32 s41, s48, 7
    s_add_u32 s40, s40, s41
    s_and_b32 s41, s25, 1
    s_lshl_b32 s41, s41, 6
    s_add_u32 s51, s40, s41
    s_lshl_b32 s40, s49, 13
    s_add_u32 s40, s40, s51
    v_lshrrev_b32 v14, 2, v2
    v_lshlrev_b32 v14, 8, v14
    v_and_b32 v15, 3, v0
    v_lshl_add_u32 v14, v15, 4, v14
    v_add_u32 v14, s40, v14
    v_add_u32 v15, 4096, v14
    s_mov_b32 s52, 0
    s_mov_b32 s53, 0
    s_mov_b32 m0, s50
    L_kvpoll:
    s_waitcnt vmcnt(0)
    v_cmp_ne_u32 vcc, s29, v34
    s_cbranch_vccz L_kvok
    s_add_u32 s52, s52, 1
    s_cmp_gt_u32 s52, {cfg.timeout}
    s_cbranch_scc1 L_kvcheck
    L_kvagain:
    global_load_dword v34, v11, s[44:45] offset:{CF_KV} sc1
    s_branch L_kvpoll
    L_kvok:
    """)
    stamp(6)
    a(f"""
    global_load_lds_dwordx4 v14, s[22:23] sc1
    s_add_u32 m0, s50, 1024
    s_or_b32 s40, s25, s26
    global_load_lds_dwordx4 v15, s[22:23] sc1
    """)
    for j in range(8):
        a(f"global_load_dword v{Q0+j}, v5, s[4:5] offset:{1024*j-4096} {NT}")
    a(f"global_load_dword v{DD}, v7, s[14:15]")
    a(f"""
    v_lshrrev_b32 v14, 1, v1
    v_lshlrev_b32 v14, 8, v14
    v_and_b32 v15, 1, v0
    v_lshl_add_u32 v14, v15, 5, v14
    v_lshl_add_u32 v14, v3, 3, v14
    s_lshl_b32 s41, s53, 22
    s_add_u32 s41, s41, s51
    s_add_u32 s41, s41, 4096
    v_add_u32 v14, s41, v14
    v_add_u32 v15, 8192, v14
    s_lshl_b32 s41, s26, 12
    s_add_u32 s41, s41, {PX}
    v_lshl_add_u32 v8, v2, 4, s41
    s_xor_b32 s41, s26, 1
    s_lshl_b32 s41, s41, 12
    s_add_u32 s41, s41, {PX}
    v_lshl_add_u32 v10, v2, 4, s41
    s_waitcnt vmcnt(9) lgkmcnt(0)
    s_barrier
    """)
    stamp(7)
    a(f"""
    s_cmp_lg_u32 s40, 0
    s_cbranch_scc1 L_noepoch
    v_mov_b32 v34, s27
    v_mov_b32 v35, 0
    s_mov_b64 exec, 1
    global_store_dword v35, v34, s[44:45] offset:{CF_EPOCH}
    s_mov_b64 exec, -1
    L_noepoch:
    s_cmp_lg_u32 s49, 0
    s_cbranch_scc1 L_convB
    """)
    def conv_variant(own, foreign, tagname):
        lg = Lgkm(a)
        seq = []
        for ph, tiles in ((0, foreign), (1, own)):
            for v in range(max(tiles) + 1):
                for rr in range(4):
                    seq.append((ph, v, rr, [j for j in tiles if j >= v]))
        PF = 5
        tok = {}
        def rd(i):
            if i < len(seq):
                ph, v, rr, _ = seq[i]
                tok[i] = lg.issue(f"ds_read_b128 {vr(BR+4*(i % NB),4)}, v13 offset:{512*v+64*(3-rr)}")
        for i in range(PF): rd(i)
        started = set()
        pend = []
        cnt = 0
        pw = []; pr = {}
        state = {"bar": False}
        def accreg(ph, j):
            tiles = own if ph else foreign
            return ACC + 16*ph + 4*tiles.index(j)
        def flush(force=False):
            while pend and (force or pend[0][0] <= cnt):
                pend.pop(0)[1]()
        def fin_foreign(j):
            def f():
                pw.append(lg.issue(f"ds_write_b128 v8, {vr(accreg(0,j),4)} offset:{1024*foreign.index(j)}"))
            return f
        def do_barrier():
            lg.wait(pw[-1])
            a("s_barrier")
            for t, j in enumerate(own):
                pr[j] = lg.issue(f"ds_read_b128 {vr(ACC+4*t,4)}, v10 offset:{1024*t}")
        def fin_own(j):
            t = own.index(j)
            r = accreg(1, j); p = ACC + 4*t
            def f1():
                lg.wait(pr[j])
                a(f"v_add_f32 v{p}, v{p}, v{r}\nv_add_f32 v{p+1}, v{p+1}, v{r+1}")
            def f2():
                a(f"v_add_f32 v{p+2}, v{p+2}, v{r+2}\nv_add_f32 v{p+3}, v{p+3}, v{r+3}")
            def f3():
                a(f"v_cvt_pk_bf16_f32 v{p}, v{p}, v{p+1}\nv_cvt_pk_bf16_f32 v{p+1}, v{p+2}, v{p+3}")
            def f4():
                ad = "v14" if j < 4 else "v15"
                off = 2048*(j & 3) - 4096
                a(f"""
                s_cbranch_scc1 L_ys_{tagname}{j}
                global_store_dwordx2 {ad}, {vr(p,2)}, s[22:23] offset:{off}
                L_yr_{tagname}{j}:
                """)
                slow_stubs.append(f"""
                L_ys_{tagname}{j}:
                global_store_dwordx2 {ad}, {vr(p,2)}, s[22:23] offset:{off} sc1
                s_branch L_yr_{tagname}{j}
                """)
            return [f1, f2, f3, f4]
        a("s_cmp_lg_u32 s53, 0")
        for i, (ph, v, rr, tiles) in enumerate(seq):
            lg.wait(tok[i])
            for n, j in enumerate(tiles):
                d = vr(accreg(ph, j), 4)
                c = d if (ph, j) in started else "0"
                started.add((ph, j))
                a(f"v_mfma_f32_16x16x32_bf16 {d}, {vr(AF+4*(4*(j-v)+rr),4)}, {vr(BR+4*(i % NB),4)}, {c}")
                cnt += 1
                if n == 0: rd(i + PF)
                flush()
            if rr == 3 and v in tiles:
                if ph == 0:
                    pend.append((cnt + 5, fin_foreign(v)))
                    if v == max(foreign): pend.append((cnt + 14, do_barrier))
                else:
                    base = max(cnt + 5, 72 + 24)
                    if pend: base = max(base, pend[-1][0] + 1)
                    for n, f in enumerate(fin_own(v)): pend.append((base + n, f))
        flush(True)
    slow_stubs = []
    conv_variant(S0, S1, "A")
    a("s_branch L_convdone\nL_convB:")
    conv_variant(S1, S0, "B")
    a("L_convdone:")
    stamp(8)
    QF, QT = 128, 144
    a(f"""
    s_lshl_b32 s54, s53, 10
    s_lshl_b32 s40, s49, 8
    s_add_u32 s40, s40, s54
    s_lshl3_add_u32 s40, s25, s40
    s_lshl2_add_u32 s40, s48, s40
    v_mov_b32 v10, s40
    s_lshr_b32 s40, s25, 2
    s_add_u32 s40, s40, 1
    s_bfe_u32 s40, s40, 0x10001
    s_lshl_b32 s40, s40, 8
    s_add_u32 s40, s40, s54
    s_lshl_b32 s41, s48, 7
    s_add_u32 s40, s40, s41
    v_and_b32 v11, 31, v0
    v_lshl_add_u32 v11, v11, 2, s40
    s_cmp_lg_u32 s53, 0
    s_mov_b64 exec, 1
    s_waitcnt vmcnt(0)
    s_cbranch_scc1 L_yf_slow
    global_store_dword v10, v33, s[44:45] offset:{CF_Y}
    L_yf_back:
    s_mov_b64 exec, -1
    """)
    slow_stubs.append(f"""
    L_yf_slow:
    global_store_dword v10, v33, s[44:45] offset:{CF_Y} sc1
    s_branch L_yf_back
    """)
    stamp(9)
    a(f"global_load_dword v34, v11, s[44:45] offset:{CF_Y} sc1")
    a(f"v_lshlrev_b32 v36, 16, v{DD}\nv_and_b32 v37, 0xffff0000, v{DD}")
    for n in range(8):
        a(f"v_lshlrev_b32 v{QF+2*n}, 16, v{Q0+n}\nv_and_b32 v{QF+2*n+1}, 0xffff0000, v{Q0+n}")
    for ch in range(2):
        for q in range(4):
            a(f"v_lshlrev_b32 v{QT+2*(7-2*q)+ch}, 16, v{KVP+4*ch+q}\nv_and_b32 v{QT+2*(6-2*q)+ch}, 0xffff0000, v{KVP+4*ch+q}")
    for n in range(8): a(f"v_pk_mul_f32 {vr(QT+2*n,2)}, {vr(QT+2*n,2)}, v[36:37]")
    a(f"""
    s_lshl_b32 s40, s53, 21
    v_add_u32 v9, s40, v9
    v_lshlrev_b32 v12, 1, v5
    v_sub_u32 v12, v12, v7
    v_add_u32 v12, 0xfffff000, v12
    v_add_u32 v13, 8192, v12
    L_ypoll:
    s_waitcnt vmcnt(0)
    v_cmp_ne_u32 vcc, s29, v34
    s_cbranch_vccz L_yok
    s_add_u32 s58, s58, 1
    s_cmp_gt_u32 s58, 0x40000
    s_cbranch_scc1 L_exit
    global_load_dword v34, v11, s[44:45] offset:{CF_Y} sc1
    s_branch L_ypoll
    L_yok:
    """)
    stamp(10)
    YL, YF = 40, 48
    a(f"""
    global_load_dwordx4 {vr(YL,4)}, v9, s[22:23] sc1
    global_load_dwordx4 {vr(YL+4,4)}, v9, s[22:23] offset:128 sc1
    s_waitcnt vmcnt(0)
    """)
    stamp(11)
    for q in range(4):
        for ch in range(2):
            a(f"v_lshlrev_b32 v{YF+4*q+ch}, 16, v{YL+4*ch+q}\nv_and_b32 v{YF+4*q+2+ch}, 0xffff0000, v{YL+4*ch+q}")
        for n in (2*q, 2*q+1):
            a(f"v_pk_add_f32 {vr(YF+2*n,2)}, {vr(YF+2*n,2)}, {vr(QT+2*n,2)}")
        for n in (2*q, 2*q+1):
            a(f"v_pk_mul_f32 {vr(YF+2*n,2)}, {vr(YF+2*n,2)}, {vr(QF+2*n,2)}")
        for n in (2*q, 2*q+1):
            a(f"v_cvt_pk_bf16_f32 v{YF+2*n}, v{YF+2*n}, v{YF+2*n+1}")
        for n in (2*q, 2*q+1):
            a(f"global_store_dword {'v12' if n < 4 else 'v13'}, v{YF+2*n}, s[20:21] offset:{2048*(n&3)-4096} {cfg.out_flag}")
    stamp_out(12)
    a("s_endpgm")
    C1, BD, A1 = 16, 48, 80
    a("L_fnet:")
    stamp(1)
    if cfg.fnet_prio: a(f"s_setprio {cfg.fnet_prio}")
    a(f"""
    v_bfe_u32 v3, v0, 1, 4
    v_lshl_add_u32 v3, v2, 4, v3
    v_and_b32 v4, 1, v0
    v_bfe_u32 v5, v0, 5, 1
    v_mul_u32_u24 v6, s41, v3
    v_lshl_add_u32 v6, v4, 9, v6
    v_lshlrev_b32 v7, 4, v3
    v_and_b32 v8, 0xdf, v0
    v_cmp_eq_u32 vcc, 1, v8
    v_mov_b32 v9, 0x400
    v_cndmask_b32 v6, v6, 0, vcc
    v_cndmask_b32 v7, v7, v9, vcc
    v_lshlrev_b32 v9, 3, v5
    v_mad_u32_u24 v6, v9, v7, v6
    v_cvt_f32_u32 v6, v6
    v_cvt_f32_u32 v7, v7
    v_mul_f32 v10, {f32(1/2048)}, v6
    v_mul_f32 v7, {f32(1/2048)}, v7
    v_add_f32 v11, v10, v7
    v_add_f32 v12, v7, v7
    v_mov_b32 v13, v12
    v_mul_f32 v14, {f32(10.0)}, v7
    v_mov_b32 v15, v14
    v_and_b32 v8, 2, v0
    v_mul_u32_u24 v8, 0x4000, v8
    v_lshl_or_b32 v8, v8, 16, v8
    """)
    for ks in range(4):
        for i2 in range(4):
            a(f"v_cos_f32 v100, v10\nv_cos_f32 v101, v11")
            if not (ks == 3 and i2 == 3):
                a(f"v_pk_add_f32 v[10:11], v[10:11], {'v[12:13]' if i2 < 3 else 'v[14:15]'}")
            a(f"v_cvt_pk_bf16_f32 v{C1+4*ks+i2}, v100, v101")
    for i in range(16): a(f"v_xor_b32 v{C1+16+i}, v{C1+i}, v8")
    a(f"""
    v_bfe_u32 v3, v0, 2, 2
    v_lshl_add_u32 v3, v5, 3, v3
    v_lshlrev_b32 v3, 6, v3
    v_bfe_u32 v4, v0, 4, 1
    v_lshl_add_u32 v3, v4, 5, v3
    v_and_b32 v4, 3, v0
    v_lshl_add_u32 v3, v4, 3, v3
    s_lshl_b32 s42, s26, 19
    s_lshl_b32 s43, s40, 11
    s_add_u32 s42, s42, s43
    s_lshl_b32 s43, s41, 7
    s_add_u32 s42, s42, s43
    s_add_u32 s42, s42, {Z1W}
    v_and_b32 v6, 31, v0
    v_lshlrev_b32 v4, 16, v5
    v_lshl_add_u32 v4, v6, 2, v4
    v_add_u32 v4, s42, v4
    s_waitcnt vmcnt(0) lgkmcnt(0)
    s_barrier
    """)
    stamp(2)
    lg = Lgkm(a)
    tk = []
    for ks in range(8):
        lg.issue(f"ds_read_b64_tr_b16 {vr(BD+4*ks,2)}, v3 offset:{1024*ks}")
        tk.append(lg.issue(f"ds_read_b64_tr_b16 {vr(BD+4*ks+2,2)}, v3 offset:{1024*ks+256}"))
    for ks in range(8):
        lg.wait(tk[ks])
        a(f"v_mfma_f32_32x32x16_bf16 {vr(A1,16)}, {vr(C1+4*ks,4)}, {vr(BD+4*ks,4)}, {vr(A1,16) if ks else 0}")
    a(f"""
    s_mul_i32 s27, s27, 0x9e3779b1
    s_add_u32 s27, s27, 0x7f4a7c15
    s_lshl4_add_u32 s42, s26, s40
    s_lshl4_add_u32 s42, s42, s41
    s_lshl_b32 s42, s42, {cfg.zfs}
    s_add_u32 s42, s42, {ZF}
    v_mov_b32 v7, s42
    v_mov_b32 v8, s27
    """)
    for j in range(4):
        for b in range(2):
            a(f"v_cvt_pk_bf16_f32 v{BD+2*j+b}, v{A1+4*j+2*b}, v{A1+4*j+2*b+1}")
            a(f"global_store_dword v4, v{BD+2*j+b}, s[22:23] sc1")
            if not (j == 3 and b == 1):
                a(f"v_add_u32 v4, {0x8000 if b == 0 else 0x18000}, v4")
    stamp(3)
    C0, CS1, TWC, TWS, CS2 = 16, 24, 32, 40, 112
    a(f"""
    s_lshr_b32 s46, s25, 2
    s_lshl3_add_u32 s46, s24, s46
    s_and_b32 s47, s25, 3
    v_bfe_u32 v9, v0, 2, 2
    s_lshl_b32 s42, s47, 2
    v_add_u32 v9, s42, v9
    v_lshlrev_b32 v9, 1, v9
    v_and_b32 v10, 1, v0
    v_bfe_u32 v11, v0, 1, 1
    v_and_b32 v12, v10, v11
    v_lshlrev_b32 v12, 4, v12
    v_mov_b32 v13, -1
    s_cmp_lg_u32 s46, 0
    s_cbranch_scc1 L_generic
    v_add_u32 v9, v9, v11
    v_lshlrev_b32 v12, 3, v11
    v_lshlrev_b32 v13, 4, v11
    v_lshlrev_b32 v13, v13, 0xffff
    L_generic:
    v_lshl_add_u32 v12, v10, 3, v12
    v_lshlrev_b32 v14, 2, v5
    v_mad_u32_u24 v12, v14, v9, v12
    v_cvt_f32_u32 v12, v12
    v_cvt_f32_u32 v9, v9
    v_mul_f32 v12, {f32(1/32)}, v12
    v_mul_f32 v9, {f32(1/32)}, v9
    """.replace("v_lshlrev_b32 v13, v13, 0xffff", "v_mov_b32 v14, 0xffff\nv_lshlrev_b32 v13, v13, v14"))
    for ks in range(2):
        for i in range(4):
            a(f"v_cos_f32 v100, v12\nv_sin_f32 v101, v12")
            if i < 3: a("v_add_f32 v12, v12, v9")
            elif ks == 0: a(f"v_fmamk_f32 v12, v9, {f32(5.0)}, v12")
            a(f"v_cvt_pk_bf16_f32 v100, v100, v101\nv_and_b32 v{C0+4*ks+i}, v100, v13")
    a(f"""
    s_waitcnt vmcnt(0)
    s_mov_b64 exec, 1
    global_store_dword v7, v8, s[22:23] sc1
    s_mov_b64 exec, -1
    """)
    stamp(4)
    a(f"""
    v_bfe_u32 v9, v0, 4, 2
    v_lshlrev_b32 v10, 2, v9
    v_mul_u32_u24 v10, v10, v1
    v_cvt_f32_u32 v10, v10
    v_cvt_f32_u32 v11, v1
    v_mul_f32 v12, {f32(1/16)}, v10
    v_mul_f32 v13, {f32(1/16)}, v11
    """)
    for i in range(4):
        a(f"v_cos_f32 v100, v12\nv_sin_f32 v101, v12")
        if i < 3: a("v_add_f32 v12, v12, v13")
        a(f"v_cvt_pk_bf16_f32 v{CS1+i}, v100, v101\nv_cvt_pk_bf16_f32 v{CS1+4+i}, -v101, v100")
    a(f"v_mul_f32 v12, {f32(1/512)}, v10\nv_mul_f32 v13, {f32(1/512)}, v11")
    for mt in range(2):
        for r in range(4):
            a(f"v_cos_f32 v{TWC+4*mt+r}, v12\nv_sin_f32 v{TWS+4*mt+r}, v12")
            if r < 3: a("v_add_f32 v12, v12, v13")
            elif mt == 0: a(f"v_fmamk_f32 v12, v13, {f32(13.0)}, v12")
    a(f"v_mul_f32 v12, {f32(1/32)}, v10\nv_mul_f32 v13, {f32(1/32)}, v11")
    for r in range(4):
        a(f"v_cos_f32 v{100+r}, v12\nv_sin_f32 v{104+r}, v12")
        if r < 3: a("v_add_f32 v12, v12, v13")
    a(f"""
    v_and_b32 v14, 1, v0
    v_mul_u32_u24 v14, 0x8000, v14
    v_lshl_or_b32 v14, v14, 16, v14
    """)
    for i in range(4): a(f"v_cvt_pk_bf16_f32 v{CS2+i}, v{100+2*i}, v{101+2*i}")
    for i in range(4): a(f"v_xor_b32 v{CS2+4+i}, v{CS2+i}, v14")
    for i in range(8): a(f"v_xor_b32 v{CS2+8+i}, 0x80000000, v{CS2+i}")
    a(f"""
    s_lshr_b32 s42, s24, 1
    s_lshl_b32 s42, s42, {8+cfg.zfs}
    s_add_u32 s42, s42, {ZF}
    v_lshl_add_u32 v7, v0, {cfg.zfs}, s42
    global_load_dword v8, v7, s[22:23] sc1
    s_lshl_b32 s42, s46, 15
    s_lshl_b32 s43, s26, 13
    s_add_u32 s42, s42, s43
    s_add_u32 s42, s42, {Z1W+4096}
    v_lshlrev_b32 v4, 9, v5
    v_lshl_add_u32 v4, v6, 2, v4
    v_add_u32 v4, s42, v4
    s_lshl_b32 s42, s26, 9
    s_add_u32 s42, s42, {ZL}
    v_lshlrev_b32 v3, 12, v5
    v_lshl_add_u32 v3, v6, 4, v3
    v_add_u32 v3, s42, v3
    s_lshl_b32 s42, s26, 12
    s_add_u32 s42, s42, {ZL}
    v_lshlrev_b32 v10, 9, v9
    v_lshl_add_u32 v10, v1, 4, v10
    v_add_u32 v10, s42, v10
    s_lshl2_add_u32 s42, s47, s26
    s_lshl_b32 s42, s42, 7
    s_add_u32 s42, s42, s46
    s_sub_u32 s43, 2048, s42
    s_add_u32 s48, s42, 64
    s_cmp_eq_u32 s46, 0
    s_cselect_b32 s43, s48, s43
    s_lshl_b32 s42, s42, 11
    s_lshl_b32 s43, s43, 11
    v_lshlrev_b32 v12, 5, v1
    v_lshl_add_u32 v12, v9, 3, v12
    v_add_u32 v11, s42, v12
    v_add_u32 v12, s43, v12
    L_zpoll:
    s_waitcnt vmcnt(0)
    v_cmp_ne_u32 vcc, s27, v8
    s_cbranch_vccz L_zok
    s_add_u32 s58, s58, 1
    s_cmp_gt_u32 s58, 0x40000
    s_cbranch_scc1 L_exit
    s_mov_b64 exec, vcc
    s_sleep 2
    global_load_dword v8, v7, s[22:23] sc1
    s_branch L_zpoll
    L_zok:
    s_mov_b64 exec, -1
    """)
    stamp(5)
    ZD, A0 = 48, 128
    for dl in range(4):
        for ks in range(2):
            for i in range(4):
                a(f"global_load_dword v{ZD+8*dl+4*ks+i}, v4, s[22:23] offset:{2048*dl+1024*ks+128*i-4096} sc1")
    for dl in range(4):
        for ks in range(2):
            a(f"s_waitcnt vmcnt({32-8*dl-4*ks-4})")
            d = vr(A0+16*dl, 16)
            a(f"v_mfma_f32_32x32x16_bf16 {d}, {vr(C0+4*ks,4)}, {vr(ZD+8*dl+4*ks,4)}, {d if ks else 0}")
    stamp(6)
    ZP = 80
    for dl in range(4):
        for j in range(2):
            for b in range(2):
                a(f"v_cvt_pk_bf16_f32 v{ZP+4*(2*j+b)+dl}, v{A0+16*dl+4*j+2*b}, v{A0+16*dl+4*j+2*b+1}")
    for j in range(2):
        for b in range(2):
            a(f"ds_write_b128 v3, {vr(ZP+4*(2*j+b),4)} offset:{2048*(4*j+b)}")
    a(f"""
    s_or_b32 s42, s2, s26
    s_waitcnt lgkmcnt(0)
    s_barrier
    """)
    stamp(7)
    lg = Lgkm(a)
    ZA, G = 48, 128
    tk = {}
    for row in range(2):
        for mt in range(2):
            tk[row, mt] = lg.issue(f"ds_read_b128 {vr(ZA+8*row+4*mt,4)}, v10 offset:{2048*row+256*mt}")
    a(f"""
    s_cmp_lg_u32 s42, 256
    s_cbranch_scc1 L_noepoch2
    v_mov_b32 v8, s27
    v_mov_b32 v7, 0
    s_mov_b64 exec, 1
    global_store_dword v7, v8, s[44:45]
    s_mov_b64 exec, -1
    L_noepoch2:
    """)
    for row in range(2):
        for mt in range(2):
            lg.wait(tk[row, mt])
            for c in range(2):
                a(f"v_mfma_f32_16x16x32_bf16 {vr(G+16*row+8*mt+4*c,4)}, {vr(ZA+8*row+4*mt,4)}, {vr(CS1+4*c,4)}, 0")
    GP, TM, YO = 64, 96, 160
    for row in range(2):
        for mt in range(2):
            re, im = G+16*row+8*mt, G+16*row+8*mt+4
            for h in range(2):
                tc, ts = vr(TWC+4*mt+2*h, 2), vr(TWS+4*mt+2*h, 2)
                a(f"v_pk_mul_f32 {vr(TM+4*h,2)}, {vr(re+2*h,2)}, {tc}")
                a(f"v_pk_mul_f32 {vr(TM+4*h+2,2)}, {vr(im+2*h,2)}, {tc}")
            for h in range(2):
                tc, ts = vr(TWC+4*mt+2*h, 2), vr(TWS+4*mt+2*h, 2)
                a(f"v_pk_fma_f32 {vr(TM+4*h,2)}, {vr(im+2*h,2)}, {ts}, {vr(TM+4*h,2)}")
                a(f"v_pk_fma_f32 {vr(TM+4*h+2,2)}, {vr(re+2*h,2)}, {ts}, {vr(TM+4*h+2,2)} neg_lo:[1,0,0] neg_hi:[1,0,0]")
            p = GP + 8*row + 4*mt
            for h in range(2):
                a(f"v_cvt_pk_bf16_f32 v{p+h}, v{TM+4*h}, v{TM+4*h+1}")
                a(f"v_cvt_pk_bf16_f32 v{p+2+h}, v{TM+4*h+2}, v{TM+4*h+3}")
            for nt in range(2):
                d = vr(YO+8*row+4*nt, 4)
                a(f"v_mfma_f32_16x16x32_bf16 {d}, {vr(p,4)}, {vr(CS2+8*nt+4*mt,4)}, {d if mt else 0}")
    for row in range(2):
        for nt in range(2):
            y = YO+8*row+4*nt
            a(f"v_cvt_pk_bf16_f32 v{y}, v{y}, v{y+1}\nv_cvt_pk_bf16_f32 v{y+1}, v{y+2}, v{y+3}")
            a(f"global_store_dwordx2 v{11+row}, {vr(y,2)}, s[20:21] offset:{1024+512*nt} {cfg.out_flag}")
    stamp_out(8)
    a("L_exit:\ns_endpgm")
    a("L_code_end:")
    a(f"""
    L_kvcheck:
    s_add_u32 s58, s58, 1
    s_cmp_gt_u32 s58, 0x40000
    s_cbranch_scc1 L_exit
    s_xor_b32 s55, s27, 0x5bd1e995
    v_mov_b32 v34, s55
    v_mov_b32 v35, s29
    s_lshl_b32 s40, s25, 3
    v_mov_b32 v36, s40
    s_mov_b64 exec, 1
    global_store_dwordx2 v36, v[34:35], s[44:45] offset:{CF_HELLO} sc1
    s_mov_b64 exec, -1
    v_and_b32 v36, 31, v0
    v_lshlrev_b32 v36, 3, v36
    global_load_dwordx2 v[34:35], v36, s[44:45] offset:{CF_HELLO} sc1
    s_waitcnt vmcnt(0)
    v_cmp_eq_u32 s[56:57], s55, v34
    v_cmp_ne_u32 vcc, s29, v35
    s_and_b64 s[56:57], s[56:57], vcc
    v_xor_b32 v35, s27, v35
    v_cmp_gt_u32 vcc, 16, v35
    s_and_b64 s[56:57], s[56:57], vcc
    s_cbranch_scc0 L_kvagain
    s_mov_b32 s53, 1
    s_mov_b32 s29, s27
    v_mov_b32 v33, s27
    v_add_u32 v9, {KVS}, v9
    v_add_u32 v14, {KVS}, v14
    v_add_u32 v15, {KVS}, v15
    global_store_dwordx4 v9, {vr(KVP,4)}, s[22:23] sc1
    global_store_dwordx4 v9, {vr(KVP+4,4)}, s[22:23] offset:128 sc1
    s_waitcnt vmcnt(0)
    s_mov_b64 exec, 1
    global_store_dword v10, v33, s[44:45] offset:{CF_SLOW+CF_KV} sc1
    s_mov_b64 exec, -1
    L_kvslowpoll:
    global_load_dword v34, v11, s[44:45] offset:{CF_SLOW+CF_KV} sc1
    s_waitcnt vmcnt(0)
    v_cmp_ne_u32 vcc, s29, v34
    s_cbranch_vccz L_kvok
    s_add_u32 s58, s58, 1
    s_cmp_gt_u32 s58, 0x40000
    s_cbranch_scc1 L_exit
    s_sleep 2
    s_branch L_kvslowpoll
    """)
    for s in slow_stubs: a(s)
    hdr = open("concat_heads__ssm_conv_h3__spectral_fnet__prompt.s.ref").read().split("; Override")[0]
    txt = hdr + f"; @launch grid=(512,1,1) block=(256,1,1) lds={LDS_BYTES}\n"
    txt += f""".amdgcn_target "amdgcn-amd-amdhsa--gfx950"
.text
.globl {KN}
.p2align 8
.type {KN},@function
{KN}:
""" + a.text() + f""".section .rodata,"a"
.p2align 6
.amdhsa_kernel {KN}
  .amdhsa_next_free_vgpr 256
  .amdhsa_next_free_sgpr 96
  .amdhsa_accum_offset 256
  .amdhsa_group_segment_fixed_size 0
  .amdhsa_kernarg_size 112
  .amdhsa_user_sgpr_count 2
  .amdhsa_user_sgpr_kernarg_segment_ptr 1
  .amdhsa_system_sgpr_workgroup_id_x 1
  .amdhsa_float_denorm_mode_32 3
.end_amdhsa_kernel
"""
    return txt, a

if __name__ == "__main__":
    cfg = Cfg()
    out = sys.argv[1]
    for kv in sys.argv[2:]:
        k, v = kv.split("=")
        cur = getattr(cfg, k)
        setattr(cfg, k, (v == "1") if isinstance(cur, bool) else type(cur)(v))
    txt, a = gen(cfg)
    open(out, "w").write(txt)
    print("instructions:", sum(1 for i in a.ins if not (i.label or i.directive)), "pad states:", a.pads)
```

```python
import sys, struct
from asmlib import *

KN = "concat_heads__ssm_conv_h3__spectral_fnet__prompt_kernel"
def f32(x): return "0x%08x" % struct.unpack("<I", struct.pack("<f", x))[0]

class Cfg:
    stamps = False
    nt = "nt"
    zfs = 7
    timeout = 64
    force_slow = False
    out_flag = ""
    conv_prio = 0
    fnet_prio = 0
    wb = False
    probe = ''

KVF, KVS, YS, Z1W = 0x000000, 0x200000, 0x400000, 0x600000
ZF = 0x800000
CF = 0x840000
CF_KV, CF_Y, CF_SLOW, CF_HELLO, CF_EPOCH = 0, 512, 1024, 2048, 3072
FE = 0x850000
STAMP = 0x4000000
HC, HCS, HCH = 0, 4160, 16640
XI, XIS = 33280, 4608
PX = 42496
LDS_BYTES = 59392
XT, ZL = 0, 8192
S0, S1 = (0, 3, 4, 7), (1, 2, 5, 6)

def gen(cfg):
    a = Asm()
    NT = cfg.nt
    nst = [0]
    role = ['c']
    def stamp(i):
        if cfg.stamps or (cfg.probe and (i == 0 or cfg.probe == role[0] + str(i))): a(f"s_memrealtime s[{60+2*i}:{61+2*i}]")
    def stamp_out(n):
        if cfg.probe:
            i = int(cfg.probe[1:]) if cfg.probe[0] == role[0] else 0
            a("s_waitcnt vmcnt(0)")
            if cfg.wb: a("s_sleep 100\nbuffer_wbl2 sc1\ns_waitcnt vmcnt(0)")
            stamp(n)
            a(f"""
            s_waitcnt lgkmcnt(0)
            s_sub_u32 s40, s{60+2*i}, s60
            s_lshl_b32 s40, s40, 2
            s_add_u32 s40, s40, 2000
            L_probe_{role[0]}:
            s_sleep 1
            s_memrealtime s[42:43]
            s_waitcnt lgkmcnt(0)
            s_sub_u32 s41, s42, s60
            s_cmp_lt_u32 s41, s40
            s_cbranch_scc1 L_probe_{role[0]}
            """)
            return
        if not cfg.stamps: return
        a("s_waitcnt vmcnt(0)")
        stamp(n)
        a("s_waitcnt lgkmcnt(0)")
        for i in range(16):
            a(f"v_mov_b32 v{40+i}, s{60+2*i}" if i <= n else f"v_mov_b32 v{40+i}, 0")
        a(f"""
        s_lshl_b32 s40, s2, 2
        s_add_u32 s40, s40, s26
        s_lshl_b32 s40, s40, 6
        s_add_u32 s40, s40, {STAMP}
        v_mov_b32 v1, s40
        s_mov_b64 exec, 1
        global_store_dwordx4 v1, v[40:43], s[22:23]
        global_store_dwordx4 v1, v[44:47], s[22:23] offset:16
        global_store_dwordx4 v1, v[48:51], s[22:23] offset:32
        global_store_dwordx4 v1, v[52:55], s[22:23] offset:48
        """)
    stamp(0)
    a(f"""
    s_load_dwordx16 s[4:19], s[0:1], 0
    s_load_dwordx2 s[22:23], s[0:1], 104
    s_load_dwordx2 s[20:21], s[0:1], 88
    s_cmp_ge_u32 s2, 512
    s_cbranch_scc1 L_exit
    s_getpc_b64 s[30:31]
    L_pc:
    v_lshlrev_b32 v1, 7, v0
    v_min_u32 v1, L_code_end-L_pc-4, v1
    global_load_dword v255, v1, s[30:31] {NT}
    s_mov_b32 s58, 0
    s_and_b32 s24, s2, 7
    s_bfe_u32 s25, s2, 0x50003
    v_lshrrev_b32 v2, 6, v0
    v_and_b32 v1, 15, v0
    v_readfirstlane_b32 s26, v2
    s_cmp_ge_u32 s2, 256
    s_cbranch_scc0 L_conv
    """)
    a(f"""
    s_and_b32 s40, s25, 1
    s_lshl1_add_u32 s40, s24, s40
    s_lshr_b32 s41, s25, 1
    s_lshl_b32 s42, s41, 10
    s_lshl_b32 s43, s40, 6
    s_add_u32 s42, s42, s43
    v_bfe_u32 v3, v0, 2, 4
    v_lshl_add_u32 v3, v2, 5, v3
    v_lshlrev_b32 v3, 14, v3
    v_and_b32 v4, 3, v0
    v_lshl_add_u32 v3, v4, 4, v3
    v_add_u32 v3, s42, v3
    v_add_u32 v4, 0x40000, v3
    s_lshl_b32 s43, s26, 11
    s_mov_b32 m0, s43
    s_waitcnt lgkmcnt(0)
    global_load_lds_dwordx4 v3, s[16:17] {NT}
    s_add_u32 m0, s43, 1024
    s_add_u32 s44, s22, {FE}
    s_addc_u32 s45, s23, 0
    global_load_lds_dwordx4 v4, s[16:17] {NT}
    s_load_dword s27, s[44:45], 0
    s_branch L_fnet
    """)
    K0, V0, W0 = 128, 140, 148
    KVP, Q0, DD = 16, 24, 32
    ACC, BR, NB, AF = 36, 68, 15, 128
    a(f"""
    L_conv:
    v_bfe_u32 v3, v0, 4, 3
    v_lshrrev_b32 v4, 7, v0
    v_lshl_add_u32 v4, v4, 4, v1
    s_lshl_b32 s40, s25, 16
    s_lshl_b32 s41, s24, 7
    s_add_u32 s40, s40, s41
    s_add_u32 s40, s40, 4096
    v_lshlrev_b32 v5, 13, v3
    v_lshl_add_u32 v5, v4, 2, v5
    v_add_u32 v5, s40, v5
    v_add_u32 v6, 0xffffe400, v5
    v_lshl_add_u32 v7, v4, 2, s41
    v_lshlrev_b32 v8, 2, v7
    s_mov_b32 s34, 0x200000
    s_mov_b32 s35, 0x20000
    s_waitcnt lgkmcnt(0)
    s_mov_b32 s32, s6
    s_mov_b32 s33, s7
    global_load_dwordx4 {vr(W0,4)}, v8, s[10:11]
    """)
    stamp(1)
    for j in range(3):
        a(f"buffer_load_dword v{K0+j}, v6, s[32:35], 0 offen offset:{1024*j} {NT}")
    for j in range(8):
        a(f"global_load_dword v{K0+3+j}, v5, s[6:7] offset:{1024*j-4096} {NT}")
    for j in range(8):
        a(f"global_load_dword v{V0+j}, v5, s[8:9] offset:{1024*j-4096} {NT}")
    if cfg.conv_prio: a(f"s_setprio {cfg.conv_prio}")
    a(f"""
    s_lshl_b32 s42, s24, 12
    s_add_u32 s42, s42, {CF}
    s_add_u32 s44, s22, s42
    s_addc_u32 s45, s23, 0
    s_load_dword s27, s[44:45], {CF_EPOCH}
    s_getreg_b32 s28, hwreg(HW_REG_XCC_ID, 0, 4)
    s_mov_b32 s36, s12
    s_mov_b32 s37, s13
    s_mov_b32 s38, 0x200000
    s_mov_b32 s39, 0x20000
    v_mov_b64 v[36:37], 0
    v_mov_b64 v[38:39], 0
    v_bfe_u32 v9, v0, 5, 1
    v_mul_u32_u24 v9, {XIS}, v9
    v_and_b32 v10, 31, v0
    v_lshl_add_u32 v9, v10, 4, v9
    v_add_u32 v9, {XI}, v9
    v_lshrrev_b32 v10, 1, v1
    v_mul_u32_u24 v10, {HCS}, v10
    v_and_b32 v11, 1, v0
    v_lshl_add_u32 v10, v11, 4, v10
    v_cmp_gt_u32 vcc, 64, v0
    v_cndmask_b32 v9, v10, v9, vcc
    ds_write_b128 v9, v[36:39]
    """)
    a(f"""
    s_lshl_b32 s40, s24, 18
    s_lshl_b32 s41, s25, 9
    s_add_u32 s41, s41, s40
    v_lshrrev_b32 v9, 1, v4
    v_lshlrev_b32 v9, 14, v9
    v_lshl_add_u32 v9, v11, 6, v9
    v_lshrrev_b32 v12, 2, v3
    v_lshl_add_u32 v9, v12, 8, v9
    v_and_b32 v12, 3, v3
    v_lshl_add_u32 v9, v12, 4, v9
    v_add_u32 v9, s41, v9
    v_lshlrev_b32 v10, 4, v0
    v_add_u32 v11, -8, v10
    s_lshl_b32 s46, s25, 13
    s_add_u32 s46, s46, s40
    s_add_u32 s47, s46, 4096
    v_lshrrev_b32 v12, 2, v0
    v_lshl_add_u32 v12, v12, 7, s46
    v_and_b32 v13, 7, v0
    v_lshlrev_b32 v13, 7, v13
    """)
    HD, HE = 72, 80
    a(f"""
    s_waitcnt vmcnt(19) lgkmcnt(0)
    s_barrier
    """)
    stamp(2)
    a(f"""
    buffer_load_dwordx4 {vr(HD,4)}, v10, s[36:39], s46 offen {NT}
    buffer_load_dwordx4 {vr(HD+4,4)}, v10, s[36:39], s47 offen {NT}
    buffer_load_dwordx2 {vr(HE,2)}, v11, s[36:39], s46 offen {NT}
    buffer_load_dwordx2 {vr(HE+2,2)}, v11, s[36:39], s47 offen {NT}
    global_load_dword v254, v12, s[22:23] nt
    global_load_dword v253, v13, s[44:45] nt
    s_mul_i32 s27, s27, 0x9e3779b1
    s_add_u32 s27, s27, 0x7f4a7c15
    s_xor_b32 s29, s27, s28
    """)
    if cfg.force_slow:
        a("s_and_b32 s28, s25, 1\ns_xor_b32 s29, s27, s28")
    WP, KF, VF, AC = 152, 160, 184, 200
    for j in range(4):
        for ch in range(2):
            src = W0 + 2*ch + (j >> 1)
            if j & 1: a(f"v_and_b32 v{WP+2*j+ch}, 0xffff0000, v{src}")
            else:     a(f"v_lshlrev_b32 v{WP+2*j+ch}, 16, v{src}")
    a("s_waitcnt vmcnt(14)")
    stamp(3)
    for n in range(11):
        a(f"v_lshlrev_b32 v{KF+2*n}, 16, v{K0+n}\nv_and_b32 v{KF+2*n+1}, 0xffff0000, v{K0+n}")
    for j in (3, 2, 1, 0):
        for n in range(8):
            k = vr(KF + 2*(n + 3 - j), 2); w = vr(WP + 2*j, 2); d = vr(AC + 2*n, 2)
            if j == 3: a(f"v_pk_mul_f32 {d}, {k}, {w}")
            else:      a(f"v_pk_fma_f32 {d}, {k}, {w}, {d}")
    a("s_waitcnt vmcnt(6)")
    for n in range(8):
        a(f"v_lshlrev_b32 v{VF+2*n}, 16, v{V0+n}\nv_and_b32 v{VF+2*n+1}, 0xffff0000, v{V0+n}")
    for n in range(8):
        a(f"v_pk_mul_f32 {vr(AC+2*n,2)}, {vr(AC+2*n,2)}, {vr(VF+2*n,2)}")
    for ch in range(2):
        for q in range(4):
            a(f"v_cvt_pk_bf16_f32 v{KVP+4*ch+q}, v{AC+2*(7-2*q)+ch}, v{AC+2*(6-2*q)+ch}")
        a(f"global_store_dwordx4 v9, {vr(KVP+4*ch,4)}, s[22:23] offset:{128*ch}")
    stamp(4)
    T = 84
    a(f"""
    v_add_u32 v11, {HC+32}, v10
    s_waitcnt vmcnt(4)
    """)
    for ch in range(2):
        d, e = HD + 4*ch, HE + 2*ch
        w = [e, e+1, d, d+1, d+2, d+3]
        t = T + 12*ch
        a(f"ds_write_b128 v11, {vr(d,4)} offset:{ch*HCH}")
        for i in range(4): a(f"v_alignbyte_b32 v{t+i}, v{w[i+2]}, v{w[i+1]}, 2")
        a(f"ds_write_b128 v11, {vr(t,4)} offset:{ch*HCH+HCS}")
        for i in range(4): a(f"v_mov_b32 v{t+4+i}, v{w[i+1]}")
        a(f"ds_write_b128 v11, {vr(t+4,4)} offset:{ch*HCH+2*HCS}")
        for i in range(4): a(f"v_alignbyte_b32 v{t+8+i}, v{w[i+1]}, v{w[i]}, 2")
        a(f"ds_write_b128 v11, {vr(t+8,4)} offset:{ch*HCH+3*HCS}")
    a(f"""
    s_lshr_b32 s48, s26, 1
    s_and_b32 s49, s26, 1
    s_lshl_b32 s40, s48, 8
    s_lshl_b32 s41, s25, 3
    s_add_u32 s40, s40, s41
    s_lshl2_add_u32 s40, s49, s40
    v_mov_b32 v10, s40
    v_mov_b32 v33, s29
    s_lshr_b32 s41, s25, 4
    s_lshl_b32 s41, s41, 8
    v_and_b32 v2, 63, v0
    v_lshl_add_u32 v11, v2, 2, s41
    s_mov_b64 exec, 1
    s_waitcnt vmcnt(0)
    global_store_dword v10, v33, s[44:45] offset:{CF_KV}
    s_mov_b64 exec, -1
    """)
    stamp(5)
    a(f"""
    v_bfe_u32 v3, v0, 4, 2
    v_and_b32 v12, 3, v0
    v_sub_u32 v12, 3, v12
    v_mul_u32_u24 v12, {HCS}, v12
    v_or_b32 v13, 3, v1
    v_lshl_add_u32 v12, v13, 1, v12
    v_lshl_add_u32 v12, v3, 4, v12
    s_mul_i32 s40, s48, {HCH}
    s_lshl_b32 s41, s49, 8
    s_add_u32 s40, s40, s41
    s_add_u32 s40, s40, {HC+2}
    v_add_u32 v12, s40, v12
    s_waitcnt lgkmcnt(0)
    s_barrier
    global_load_dword v34, v11, s[44:45] offset:{CF_KV} sc1
    """)
    for u in range(8):
        for rr in range(4):
            f = AF + 4*(4*u + rr)
            a(f"ds_read_b64 {vr(f,2)}, v12 offset:{512*u+64*rr}")
            a(f"ds_read_b64 {vr(f+2,2)}, v12 offset:{512*u+64*rr+8}")
    a(f"""
    s_mul_i32 s40, s48, {XIS}
    s_add_u32 s50, s40, {XI+512}
    s_sub_u32 s40, s50, s41
    s_sub_u32 s40, s40, 176
    v_lshlrev_b32 v13, 5, v1
    v_lshlrev_b32 v14, 4, v3
    v_sub_u32 v13, v13, v14
    v_add_u32 v13, s40, v13
    s_lshl_b32 s40, s49, 11
    s_add_u32 s50, s50, s40
    s_lshl_b32 s40, s24, 18
    s_lshr_b32 s41, s25, 1
    s_lshl_b32 s41, s41, 14
    s_add_u32 s40, s40, s41
    s_lshl_b32 s41, s48, 7
    s_add_u32 s40, s40, s41
    s_and_b32 s41, s25, 1
    s_lshl_b32 s41, s41, 6
    s_add_u32 s51, s40, s41
    s_lshl_b32 s40, s49, 13
    s_add_u32 s40, s40, s51
    v_lshrrev_b32 v14, 2, v2
    v_lshlrev_b32 v14, 8, v14
    v_and_b32 v15, 3, v0
    v_lshl_add_u32 v14, v15, 4, v14
    v_add_u32 v14, s40, v14
    v_add_u32 v15, 4096, v14
    s_mov_b32 s52, 0
    s_mov_b32 s53, 0
    s_mov_b32 m0, s50
    L_kvpoll:
    s_waitcnt vmcnt(0)
    v_cmp_ne_u32 vcc, s29, v34
    s_cbranch_vccz L_kvok
    s_add_u32 s52, s52, 1
    s_cmp_gt_u32 s52, {cfg.timeout}
    s_cbranch_scc1 L_kvcheck
    L_kvagain:
    global_load_dword v34, v11, s[44:45] offset:{CF_KV} sc1
    s_branch L_kvpoll
    L_kvok:
    """)
    stamp(6)
    a(f"""
    global_load_lds_dwordx4 v14, s[22:23] sc1
    s_add_u32 m0, s50, 1024
    s_or_b32 s40, s25, s26
    global_load_lds_dwordx4 v15, s[22:23] sc1
    """)
    for j in range(8):
        a(f"global_load_dword v{Q0+j}, v5, s[4:5] offset:{1024*j-4096} {NT}")
    a(f"global_load_dword v{DD}, v7, s[14:15]")
    a(f"""
    v_lshrrev_b32 v14, 1, v1
    v_lshlrev_b32 v14, 8, v14
    v_and_b32 v15, 1, v0
    v_lshl_add_u32 v14, v15, 5, v14
    v_lshl_add_u32 v14, v3, 3, v14
    s_lshl_b32 s41, s53, 22
    s_add_u32 s41, s41, s51
    s_add_u32 s41, s41, 4096
    v_add_u32 v14, s41, v14
    v_add_u32 v15, 8192, v14
    s_lshl_b32 s41, s26, 12
    s_add_u32 s41, s41, {PX}
    v_lshl_add_u32 v8, v2, 4, s41
    s_xor_b32 s41, s26, 1
    s_lshl_b32 s41, s41, 12
    s_add_u32 s41, s41, {PX}
    v_lshl_add_u32 v10, v2, 4, s41
    s_waitcnt vmcnt(9) lgkmcnt(0)
    s_barrier
    """)
    stamp(7)
    a(f"""
    s_cmp_lg_u32 s40, 0
    s_cbranch_scc1 L_noepoch
    v_mov_b32 v34, s27
    v_mov_b32 v35, 0
    s_mov_b64 exec, 1
    global_store_dword v35, v34, s[44:45] offset:{CF_EPOCH}
    s_mov_b64 exec, -1
    L_noepoch:
    s_cmp_lg_u32 s49, 0
    s_cbranch_scc1 L_convB
    """)
    def conv_variant(own, foreign, tagname):
        lg = Lgkm(a)
        seq = []
        for ph, tiles in ((0, foreign), (1, own)):
            for v in range(max(tiles) + 1):
                for rr in range(4):
                    seq.append((ph, v, rr, [j for j in tiles if j >= v]))
        PF = 5
        tok = {}
        def rd(i):
            if i < len(seq):
                ph, v, rr, _ = seq[i]
                tok[i] = lg.issue(f"ds_read_b128 {vr(BR+4*(i % NB),4)}, v13 offset:{512*v+64*(3-rr)}")
        for i in range(PF): rd(i)
        started = set()
        pend = []
        cnt = 0
        pw = []; pr = {}
        state = {"bar": False}
        def accreg(ph, j):
            tiles = own if ph else foreign
            return ACC + 16*ph + 4*tiles.index(j)
        def flush(force=False):
            while pend and (force or pend[0][0] <= cnt):
                pend.pop(0)[1]()
        def fin_foreign(j):
            def f():
                pw.append(lg.issue(f"ds_write_b128 v8, {vr(accreg(0,j),4)} offset:{1024*foreign.index(j)}"))
            return f
        def do_barrier():
            lg.wait(pw[-1])
            a("s_barrier")
            for t, j in enumerate(own):
                pr[j] = lg.issue(f"ds_read_b128 {vr(ACC+4*t,4)}, v10 offset:{1024*t}")
        def fin_own(j):
            t = own.index(j)
            r = accreg(1, j); p = ACC + 4*t
            def f1():
                lg.wait(pr[j])
                a(f"v_add_f32 v{p}, v{p}, v{r}\nv_add_f32 v{p+1}, v{p+1}, v{r+1}")
            def f2():
                a(f"v_add_f32 v{p+2}, v{p+2}, v{r+2}\nv_add_f32 v{p+3}, v{p+3}, v{r+3}")
            def f3():
                a(f"v_cvt_pk_bf16_f32 v{p}, v{p}, v{p+1}\nv_cvt_pk_bf16_f32 v{p+1}, v{p+2}, v{p+3}")
            def f4():
                ad = "v14" if j < 4 else "v15"
                off = 2048*(j & 3) - 4096
                a(f"""
                s_cbranch_scc1 L_ys_{tagname}{j}
                global_store_dwordx2 {ad}, {vr(p,2)}, s[22:23] offset:{off}
                L_yr_{tagname}{j}:
                """)
                slow_stubs.append(f"""
                L_ys_{tagname}{j}:
                global_store_dwordx2 {ad}, {vr(p,2)}, s[22:23] offset:{off} sc1
                s_branch L_yr_{tagname}{j}
                """)
            return [f1, f2, f3, f4]
        a("s_cmp_lg_u32 s53, 0")
        for i, (ph, v, rr, tiles) in enumerate(seq):
            lg.wait(tok[i])
            for n, j in enumerate(tiles):
                d = vr(accreg(ph, j), 4)
                c = d if (ph, j) in started else "0"
                started.add((ph, j))
                a(f"v_mfma_f32_16x16x32_bf16 {d}, {vr(AF+4*(4*(j-v)+rr),4)}, {vr(BR+4*(i % NB),4)}, {c}")
                cnt += 1
                if n == 0: rd(i + PF)
                flush()
            if rr == 3 and v in tiles:
                if ph == 0:
                    pend.append((cnt + 5, fin_foreign(v)))
                    if v == max(foreign): pend.append((cnt + 14, do_barrier))
                else:
                    base = max(cnt + 5, 72 + 24)
                    if pend: base = max(base, pend[-1][0] + 1)
                    for n, f in enumerate(fin_own(v)): pend.append((base + n, f))
        flush(True)
    slow_stubs = []
    conv_variant(S0, S1, "A")
    a("s_branch L_convdone\nL_convB:")
    conv_variant(S1, S0, "B")
    a("L_convdone:")
    stamp(8)
    QF, QT = 128, 144
    a(f"""
    s_lshl_b32 s54, s53, 10
    s_lshl_b32 s40, s49, 8
    s_add_u32 s40, s40, s54
    s_lshl3_add_u32 s40, s25, s40
    s_lshl2_add_u32 s40, s48, s40
    v_mov_b32 v10, s40
    s_lshr_b32 s40, s25, 2
    s_add_u32 s40, s40, 1
    s_bfe_u32 s40, s40, 0x10001
    s_lshl_b32 s40, s40, 8
    s_add_u32 s40, s40, s54
    s_lshl_b32 s41, s48, 7
    s_add_u32 s40, s40, s41
    v_and_b32 v11, 31, v0
    v_lshl_add_u32 v11, v11, 2, s40
    s_cmp_lg_u32 s53, 0
    s_mov_b64 exec, 1
    s_waitcnt vmcnt(0)
    s_cbranch_scc1 L_yf_slow
    global_store_dword v10, v33, s[44:45] offset:{CF_Y}
    L_yf_back:
    s_mov_b64 exec, -1
    """)
    slow_stubs.append(f"""
    L_yf_slow:
    global_store_dword v10, v33, s[44:45] offset:{CF_Y} sc1
    s_branch L_yf_back
    """)
    stamp(9)
    a(f"global_load_dword v34, v11, s[44:45] offset:{CF_Y} sc1")
    a(f"v_lshlrev_b32 v36, 16, v{DD}\nv_and_b32 v37, 0xffff0000, v{DD}")
    for n in range(8):
        a(f"v_lshlrev_b32 v{QF+2*n}, 16, v{Q0+n}\nv_and_b32 v{QF+2*n+1}, 0xffff0000, v{Q0+n}")
    for ch in range(2):
        for q in range(4):
            a(f"v_lshlrev_b32 v{QT+2*(7-2*q)+ch}, 16, v{KVP+4*ch+q}\nv_and_b32 v{QT+2*(6-2*q)+ch}, 0xffff0000, v{KVP+4*ch+q}")
    for n in range(8): a(f"v_pk_mul_f32 {vr(QT+2*n,2)}, {vr(QT+2*n,2)}, v[36:37]")
    a(f"""
    s_lshl_b32 s40, s53, 21
    v_add_u32 v9, s40, v9
    v_lshlrev_b32 v12, 1, v5
    v_sub_u32 v12, v12, v7
    v_add_u32 v12, 0xfffff000, v12
    v_add_u32 v13, 8192, v12
    L_ypoll:
    s_waitcnt vmcnt(0)
    v_cmp_ne_u32 vcc, s29, v34
    s_cbranch_vccz L_yok
    s_add_u32 s58, s58, 1
    s_cmp_gt_u32 s58, 0x40000
    s_cbranch_scc1 L_exit
    global_load_dword v34, v11, s[44:45] offset:{CF_Y} sc1
    s_branch L_ypoll
    L_yok:
    """)
    stamp(10)
    YL, YF = 40, 48
    a(f"""
    global_load_dwordx4 {vr(YL,4)}, v9, s[22:23] sc1
    global_load_dwordx4 {vr(YL+4,4)}, v9, s[22:23] offset:128 sc1
    s_waitcnt vmcnt(0)
    """)
    stamp(11)
    for q in range(4):
        for ch in range(2):
            a(f"v_lshlrev_b32 v{YF+4*q+ch}, 16, v{YL+4*ch+q}\nv_and_b32 v{YF+4*q+2+ch}, 0xffff0000, v{YL+4*ch+q}")
        for n in (2*q, 2*q+1):
            a(f"v_pk_add_f32 {vr(YF+2*n,2)}, {vr(YF+2*n,2)}, {vr(QT+2*n,2)}")
        for n in (2*q, 2*q+1):
            a(f"v_pk_mul_f32 {vr(YF+2*n,2)}, {vr(YF+2*n,2)}, {vr(QF+2*n,2)}")
        for n in (2*q, 2*q+1):
            a(f"v_cvt_pk_bf16_f32 v{YF+2*n}, v{YF+2*n}, v{YF+2*n+1}")
        for n in (2*q, 2*q+1):
            a(f"global_store_dword {'v12' if n < 4 else 'v13'}, v{YF+2*n}, s[20:21] offset:{2048*(n&3)-4096} {cfg.out_flag}")
    stamp_out(12)
    a("s_endpgm")
    C1, BD, A1 = 16, 48, 80
    a("L_fnet:")
    role[0] = 'f'
    stamp(1)
    if cfg.fnet_prio: a(f"s_setprio {cfg.fnet_prio}")
    a(f"""
    v_bfe_u32 v3, v0, 1, 4
    v_lshl_add_u32 v3, v2, 4, v3
    v_and_b32 v4, 1, v0
    v_bfe_u32 v5, v0, 5, 1
    v_mul_u32_u24 v6, s41, v3
    v_lshl_add_u32 v6, v4, 9, v6
    v_lshlrev_b32 v7, 4, v3
    v_and_b32 v8, 0xdf, v0
    v_cmp_eq_u32 vcc, 1, v8
    v_mov_b32 v9, 0x400
    v_cndmask_b32 v6, v6, 0, vcc
    v_cndmask_b32 v7, v7, v9, vcc
    v_lshlrev_b32 v9, 3, v5
    v_mad_u32_u24 v6, v9, v7, v6
    v_cvt_f32_u32 v6, v6
    v_cvt_f32_u32 v7, v7
    v_mul_f32 v10, {f32(1/2048)}, v6
    v_mul_f32 v7, {f32(1/2048)}, v7
    v_add_f32 v11, v10, v7
    v_add_f32 v12, v7, v7
    v_mov_b32 v13, v12
    v_mul_f32 v14, {f32(10.0)}, v7
    v_mov_b32 v15, v14
    v_and_b32 v8, 2, v0
    v_mul_u32_u24 v8, 0x4000, v8
    v_lshl_or_b32 v8, v8, 16, v8
    """)
    for ks in range(4):
        for i2 in range(4):
            a(f"v_cos_f32 v100, v10\nv_cos_f32 v101, v11")
            if not (ks == 3 and i2 == 3):
                a(f"v_pk_add_f32 v[10:11], v[10:11], {'v[12:13]' if i2 < 3 else 'v[14:15]'}")
            a(f"v_cvt_pk_bf16_f32 v{C1+4*ks+i2}, v100, v101")
    for i in range(16): a(f"v_xor_b32 v{C1+16+i}, v{C1+i}, v8")
    a(f"""
    v_bfe_u32 v3, v0, 2, 2
    v_lshl_add_u32 v3, v5, 3, v3
    v_lshlrev_b32 v3, 6, v3
    v_bfe_u32 v4, v0, 4, 1
    v_lshl_add_u32 v3, v4, 5, v3
    v_and_b32 v4, 3, v0
    v_lshl_add_u32 v3, v4, 3, v3
    s_lshl_b32 s42, s26, 19
    s_lshl_b32 s43, s40, 11
    s_add_u32 s42, s42, s43
    s_lshl_b32 s43, s41, 7
    s_add_u32 s42, s42, s43
    s_add_u32 s42, s42, {Z1W}
    v_and_b32 v6, 31, v0
    v_lshlrev_b32 v4, 16, v5
    v_lshl_add_u32 v4, v6, 2, v4
    v_add_u32 v4, s42, v4
    s_waitcnt vmcnt(0) lgkmcnt(0)
    s_barrier
    """)
    stamp(2)
    lg = Lgkm(a)
    tk = []
    for ks in range(8):
        lg.issue(f"ds_read_b64_tr_b16 {vr(BD+4*ks,2)}, v3 offset:{1024*ks}")
        tk.append(lg.issue(f"ds_read_b64_tr_b16 {vr(BD+4*ks+2,2)}, v3 offset:{1024*ks+256}"))
    for ks in range(8):
        lg.wait(tk[ks])
        a(f"v_mfma_f32_32x32x16_bf16 {vr(A1,16)}, {vr(C1+4*ks,4)}, {vr(BD+4*ks,4)}, {vr(A1,16) if ks else 0}")
    a(f"""
    s_mul_i32 s27, s27, 0x9e3779b1
    s_add_u32 s27, s27, 0x7f4a7c15
    s_lshl4_add_u32 s42, s26, s40
    s_lshl4_add_u32 s42, s42, s41
    s_lshl_b32 s42, s42, {cfg.zfs}
    s_add_u32 s42, s42, {ZF}
    v_mov_b32 v7, s42
    v_mov_b32 v8, s27
    """)
    for j in range(4):
        for b in range(2):
            a(f"v_cvt_pk_bf16_f32 v{BD+2*j+b}, v{A1+4*j+2*b}, v{A1+4*j+2*b+1}")
            a(f"global_store_dword v4, v{BD+2*j+b}, s[22:23] sc1")
            if not (j == 3 and b == 1):
                a(f"v_add_u32 v4, {0x8000 if b == 0 else 0x18000}, v4")
    stamp(3)
    C0, CS1, TWC, TWS, CS2 = 16, 24, 32, 40, 112
    a(f"""
    s_lshr_b32 s46, s25, 2
    s_lshl3_add_u32 s46, s24, s46
    s_and_b32 s47, s25, 3
    v_bfe_u32 v9, v0, 2, 2
    s_lshl_b32 s42, s47, 2
    v_add_u32 v9, s42, v9
    v_lshlrev_b32 v9, 1, v9
    v_and_b32 v10, 1, v0
    v_bfe_u32 v11, v0, 1, 1
    v_and_b32 v12, v10, v11
    v_lshlrev_b32 v12, 4, v12
    v_mov_b32 v13, -1
    s_cmp_lg_u32 s46, 0
    s_cbranch_scc1 L_generic
    v_add_u32 v9, v9, v11
    v_lshlrev_b32 v12, 3, v11
    v_lshlrev_b32 v13, 4, v11
    v_lshlrev_b32 v13, v13, 0xffff
    L_generic:
    v_lshl_add_u32 v12, v10, 3, v12
    v_lshlrev_b32 v14, 2, v5
    v_mad_u32_u24 v12, v14, v9, v12
    v_cvt_f32_u32 v12, v12
    v_cvt_f32_u32 v9, v9
    v_mul_f32 v12, {f32(1/32)}, v12
    v_mul_f32 v9, {f32(1/32)}, v9
    """.replace("v_lshlrev_b32 v13, v13, 0xffff", "v_mov_b32 v14, 0xffff\nv_lshlrev_b32 v13, v13, v14"))
    for ks in range(2):
        for i in range(4):
            a(f"v_cos_f32 v100, v12\nv_sin_f32 v101, v12")
            if i < 3: a("v_add_f32 v12, v12, v9")
            elif ks == 0: a(f"v_fmamk_f32 v12, v9, {f32(5.0)}, v12")
            a(f"v_cvt_pk_bf16_f32 v100, v100, v101\nv_and_b32 v{C0+4*ks+i}, v100, v13")
    a(f"""
    s_waitcnt vmcnt(0)
    s_mov_b64 exec, 1
    global_store_dword v7, v8, s[22:23] sc1
    s_mov_b64 exec, -1
    """)
    stamp(4)
    a(f"""
    v_bfe_u32 v9, v0, 4, 2
    v_lshlrev_b32 v10, 2, v9
    v_mul_u32_u24 v10, v10, v1
    v_cvt_f32_u32 v10, v10
    v_cvt_f32_u32 v11, v1
    v_mul_f32 v12, {f32(1/16)}, v10
    v_mul_f32 v13, {f32(1/16)}, v11
    """)
    for i in range(4):
        a(f"v_cos_f32 v100, v12\nv_sin_f32 v101, v12")
        if i < 3: a("v_add_f32 v12, v12, v13")
        a(f"v_cvt_pk_bf16_f32 v{CS1+i}, v100, v101\nv_cvt_pk_bf16_f32 v{CS1+4+i}, -v101, v100")
    a(f"v_mul_f32 v12, {f32(1/512)}, v10\nv_mul_f32 v13, {f32(1/512)}, v11")
    for mt in range(2):
        for r in range(4):
            a(f"v_cos_f32 v{TWC+4*mt+r}, v12\nv_sin_f32 v{TWS+4*mt+r}, v12")
            if r < 3: a("v_add_f32 v12, v12, v13")
            elif mt == 0: a(f"v_fmamk_f32 v12, v13, {f32(13.0)}, v12")
    a(f"v_mul_f32 v12, {f32(1/32)}, v10\nv_mul_f32 v13, {f32(1/32)}, v11")
    for r in range(4):
        a(f"v_cos_f32 v{100+r}, v12\nv_sin_f32 v{104+r}, v12")
        if r < 3: a("v_add_f32 v12, v12, v13")
    a(f"""
    v_and_b32 v14, 1, v0
    v_mul_u32_u24 v14, 0x8000, v14
    v_lshl_or_b32 v14, v14, 16, v14
    """)
    for i in range(4): a(f"v_cvt_pk_bf16_f32 v{CS2+i}, v{100+2*i}, v{101+2*i}")
    for i in range(4): a(f"v_xor_b32 v{CS2+4+i}, v{CS2+i}, v14")
    for i in range(8): a(f"v_xor_b32 v{CS2+8+i}, 0x80000000, v{CS2+i}")
    a(f"""
    s_lshr_b32 s42, s24, 1
    s_lshl_b32 s42, s42, {8+cfg.zfs}
    s_add_u32 s42, s42, {ZF}
    v_lshl_add_u32 v7, v0, {cfg.zfs}, s42
    global_load_dword v8, v7, s[22:23] sc1
    s_lshl_b32 s42, s46, 15
    s_lshl_b32 s43, s26, 13
    s_add_u32 s42, s42, s43
    s_add_u32 s42, s42, {Z1W+4096}
    v_lshlrev_b32 v4, 9, v5
    v_lshl_add_u32 v4, v6, 2, v4
    v_add_u32 v4, s42, v4
    s_lshl_b32 s42, s26, 9
    s_add_u32 s42, s42, {ZL}
    v_lshlrev_b32 v3, 12, v5
    v_lshl_add_u32 v3, v6, 4, v3
    v_add_u32 v3, s42, v3
    s_lshl_b32 s42, s26, 12
    s_add_u32 s42, s42, {ZL}
    v_lshlrev_b32 v10, 9, v9
    v_lshl_add_u32 v10, v1, 4, v10
    v_add_u32 v10, s42, v10
    s_lshl2_add_u32 s42, s47, s26
    s_lshl_b32 s42, s42, 7
    s_add_u32 s42, s42, s46
    s_sub_u32 s43, 2048, s42
    s_add_u32 s48, s42, 64
    s_cmp_eq_u32 s46, 0
    s_cselect_b32 s43, s48, s43
    s_lshl_b32 s42, s42, 11
    s_lshl_b32 s43, s43, 11
    v_lshlrev_b32 v12, 5, v1
    v_lshl_add_u32 v12, v9, 3, v12
    v_add_u32 v11, s42, v12
    v_add_u32 v12, s43, v12
    L_zpoll:
    s_waitcnt vmcnt(0)
    v_cmp_ne_u32 vcc, s27, v8
    s_cbranch_vccz L_zok
    s_add_u32 s58, s58, 1
    s_cmp_gt_u32 s58, 0x40000
    s_cbranch_scc1 L_exit
    s_mov_b64 exec, vcc
    s_sleep 2
    global_load_dword v8, v7, s[22:23] sc1
    s_branch L_zpoll
    L_zok:
    s_mov_b64 exec, -1
    """)
    stamp(5)
    ZD, A0 = 48, 128
    for dl in range(4):
        for ks in range(2):
            for i in range(4):
                a(f"global_load_dword v{ZD+8*dl+4*ks+i}, v4, s[22:23] offset:{2048*dl+1024*ks+128*i-4096} sc1")
    for dl in range(4):
        for ks in range(2):
            a(f"s_waitcnt vmcnt({32-8*dl-4*ks-4})")
            d = vr(A0+16*dl, 16)
            a(f"v_mfma_f32_32x32x16_bf16 {d}, {vr(C0+4*ks,4)}, {vr(ZD+8*dl+4*ks,4)}, {d if ks else 0}")
    stamp(6)
    ZP = 80
    for dl in range(4):
        for j in range(2):
            for b in range(2):
                a(f"v_cvt_pk_bf16_f32 v{ZP+4*(2*j+b)+dl}, v{A0+16*dl+4*j+2*b}, v{A0+16*dl+4*j+2*b+1}")
    for j in range(2):
        for b in range(2):
            a(f"ds_write_b128 v3, {vr(ZP+4*(2*j+b),4)} offset:{2048*(4*j+b)}")
    a(f"""
    s_or_b32 s42, s2, s26
    s_waitcnt lgkmcnt(0)
    s_barrier
    """)
    stamp(7)
    lg = Lgkm(a)
    ZA, G = 48, 128
    tk = {}
    for row in range(2):
        for mt in range(2):
            tk[row, mt] = lg.issue(f"ds_read_b128 {vr(ZA+8*row+4*mt,4)}, v10 offset:{2048*row+256*mt}")
    a(f"""
    s_cmp_lg_u32 s42, 256
    s_cbranch_scc1 L_noepoch2
    v_mov_b32 v8, s27
    v_mov_b32 v7, 0
    s_mov_b64 exec, 1
    global_store_dword v7, v8, s[44:45]
    s_mov_b64 exec, -1
    L_noepoch2:
    """)
    for row in range(2):
        for mt in range(2):
            lg.wait(tk[row, mt])
            for c in range(2):
                a(f"v_mfma_f32_16x16x32_bf16 {vr(G+16*row+8*mt+4*c,4)}, {vr(ZA+8*row+4*mt,4)}, {vr(CS1+4*c,4)}, 0")
    GP, TM, YO = 64, 96, 160
    for row in range(2):
        for mt in range(2):
            re, im = G+16*row+8*mt, G+16*row+8*mt+4
            for h in range(2):
                tc, ts = vr(TWC+4*mt+2*h, 2), vr(TWS+4*mt+2*h, 2)
                a(f"v_pk_mul_f32 {vr(TM+4*h,2)}, {vr(re+2*h,2)}, {tc}")
                a(f"v_pk_mul_f32 {vr(TM+4*h+2,2)}, {vr(im+2*h,2)}, {tc}")
            for h in range(2):
                tc, ts = vr(TWC+4*mt+2*h, 2), vr(TWS+4*mt+2*h, 2)
                a(f"v_pk_fma_f32 {vr(TM+4*h,2)}, {vr(im+2*h,2)}, {ts}, {vr(TM+4*h,2)}")
                a(f"v_pk_fma_f32 {vr(TM+4*h+2,2)}, {vr(re+2*h,2)}, {ts}, {vr(TM+4*h+2,2)} neg_lo:[1,0,0] neg_hi:[1,0,0]")
            p = GP + 8*row + 4*mt
            for h in range(2):
                a(f"v_cvt_pk_bf16_f32 v{p+h}, v{TM+4*h}, v{TM+4*h+1}")
                a(f"v_cvt_pk_bf16_f32 v{p+2+h}, v{TM+4*h+2}, v{TM+4*h+3}")
            for nt in range(2):
                d = vr(YO+8*row+4*nt, 4)
                a(f"v_mfma_f32_16x16x32_bf16 {d}, {vr(p,4)}, {vr(CS2+8*nt+4*mt,4)}, {d if mt else 0}")
    for row in range(2):
        for nt in range(2):
            y = YO+8*row+4*nt
            a(f"v_cvt_pk_bf16_f32 v{y}, v{y}, v{y+1}\nv_cvt_pk_bf16_f32 v{y+1}, v{y+2}, v{y+3}")
            a(f"global_store_dwordx2 v{11+row}, {vr(y,2)}, s[20:21] offset:{1024+512*nt} {cfg.out_flag}")
    stamp_out(8)
    a("L_exit:\ns_endpgm")
    a("L_code_end:")
    a(f"""
    L_kvcheck:
    s_add_u32 s58, s58, 1
    s_cmp_gt_u32 s58, 0x40000
    s_cbranch_scc1 L_exit
    s_xor_b32 s55, s27, 0x5bd1e995
    v_mov_b32 v34, s55
    v_mov_b32 v35, s29
    s_lshl_b32 s40, s25, 3
    v_mov_b32 v36, s40
    s_mov_b64 exec, 1
    global_store_dwordx2 v36, v[34:35], s[44:45] offset:{CF_HELLO} sc1
    s_mov_b64 exec, -1
    v_and_b32 v36, 31, v0
    v_lshlrev_b32 v36, 3, v36
    global_load_dwordx2 v[34:35], v36, s[44:45] offset:{CF_HELLO} sc1
    s_waitcnt vmcnt(0)
    v_cmp_eq_u32 s[56:57], s55, v34
    v_cmp_ne_u32 vcc, s29, v35
    s_and_b64 s[56:57], s[56:57], vcc
    v_xor_b32 v35, s27, v35
    v_cmp_gt_u32 vcc, 16, v35
    s_and_b64 s[56:57], s[56:57], vcc
    s_cbranch_scc0 L_kvagain
    s_mov_b32 s53, 1
    s_mov_b32 s29, s27
    v_mov_b32 v33, s27
    v_add_u32 v9, {KVS}, v9
    v_add_u32 v14, {KVS}, v14
    v_add_u32 v15, {KVS}, v15
    global_store_dwordx4 v9, {vr(KVP,4)}, s[22:23] sc1
    global_store_dwordx4 v9, {vr(KVP+4,4)}, s[22:23] offset:128 sc1
    s_waitcnt vmcnt(0)
    s_mov_b64 exec, 1
    global_store_dword v10, v33, s[44:45] offset:{CF_SLOW+CF_KV} sc1
    s_mov_b64 exec, -1
    L_kvslowpoll:
    global_load_dword v34, v11, s[44:45] offset:{CF_SLOW+CF_KV} sc1
    s_waitcnt vmcnt(0)
    v_cmp_ne_u32 vcc, s29, v34
    s_cbranch_vccz L_kvok
    s_add_u32 s58, s58, 1
    s_cmp_gt_u32 s58, 0x40000
    s_cbranch_scc1 L_exit
    s_sleep 2
    s_branch L_kvslowpoll
    """)
    for s in slow_stubs: a(s)
    hdr = open("concat_heads__ssm_conv_h3__spectral_fnet__prompt.s.ref").read().split("; Override")[0]
    txt = hdr + f"; @launch grid=(512,1,1) block=(256,1,1) lds={LDS_BYTES}\n"
    txt += f""".amdgcn_target "amdgcn-amd-amdhsa--gfx950"
.text
.globl {KN}
.p2align 8
.type {KN},@function
{KN}:
""" + a.text() + f""".section .rodata,"a"
.p2align 6
.amdhsa_kernel {KN}
  .amdhsa_next_free_vgpr 256
  .amdhsa_next_free_sgpr 96
  .amdhsa_accum_offset 256
  .amdhsa_group_segment_fixed_size 0
  .amdhsa_kernarg_size 112
  .amdhsa_user_sgpr_count 2
  .amdhsa_user_sgpr_kernarg_segment_ptr 1
  .amdhsa_system_sgpr_workgroup_id_x 1
  .amdhsa_float_denorm_mode_32 3
.end_amdhsa_kernel
"""
    return txt, a

if __name__ == "__main__":
    cfg = Cfg()
    out = sys.argv[1]
    for kv in sys.argv[2:]:
        k, v = kv.split("=")
        cur = getattr(cfg, k)
        setattr(cfg, k, (v == "1") if isinstance(cur, bool) else type(cur)(v))
    txt, a = gen(cfg)
    open(out, "w").write(txt)
    print("instructions:", sum(1 for i in a.ins if not (i.label or i.directive)), "pad states:", a.pads)
```

```python
import sys, struct
from asmlib import *

KN = "concat_heads__ssm_conv_h3__spectral_fnet__prompt_kernel"
def f32(x): return "0x%08x" % struct.unpack("<I", struct.pack("<f", x))[0]

class Cfg:
    stamps = False
    cyc = False
    probe = ''
    nt = ""
    zfs = 7
    timeout = 64
    force_slow = False
    out_flag = "nt"
    xflag = "nt"
    kvflag = ""
    conv_prio = 0
    fnet_prio = 0
    pf = 5
    asplit = 40
    prefill = 'l'
    b0 = 1
    hearly = 1
    hfirst = 1
    apre = 32
    aper = 2
    qat = 2

KVF, KVS, YS, Z1W = 0x000000, 0x200000, 0x400000, 0x600000
ZF = 0x800000
CF = 0x840000
CF_KV, CF_Y, CF_SLOW, CF_HELLO = 0, 512, 1024, 2048
FE = 0x850000
STAMP = 0x4000000
HC, HCS, HCH = 0, 4160, 16640
XI, XIS = 33280, 4608
PX = 42496
XT = 58880
ZL = XT + 8192
FL = ZL + 16384
LDS_BYTES = FL + 64
S0, S1 = (0, 3, 4, 7), (1, 2, 5, 6)
BOUND = "s_add_u32 s58, s58, 1\ns_cmp_gt_u32 s58, 0x40000\ns_cbranch_scc1 L_exit\n"

def gen(cfg):
    a = Asm()
    NT = cfg.nt
    role = ['c']
    uid = [0]
    def stamp(i):
        if cfg.stamps or (cfg.probe and (i == 0 or cfg.probe == role[0] + str(i))):
            a(f"{'s_memtime' if cfg.cyc else 's_memrealtime'} s[{60+2*i}:{61+2*i}]")
    def stamp_out(n):
        uid[0] += 1
        if cfg.probe:
            i = int(cfg.probe[1:]) if cfg.probe[0] == role[0] else 0
            a("s_waitcnt vmcnt(0)")
            stamp(n)
            a(f"""
            s_waitcnt lgkmcnt(0)
            s_sub_u32 s40, s{60+2*i}, s60
            s_lshl_b32 s40, s40, 2
            s_add_u32 s40, s40, 2000
            L_probe_{uid[0]}:
            s_sleep 1
            s_memrealtime s[42:43]
            s_waitcnt lgkmcnt(0)
            s_sub_u32 s41, s42, s60
            s_cmp_lt_u32 s41, s40
            s_cbranch_scc1 L_probe_{uid[0]}
            """)
            return
        if not cfg.stamps: return
        a("s_waitcnt vmcnt(0)")
        stamp(n)
        a("s_waitcnt lgkmcnt(0)")
        for i in range(16):
            a(f"v_mov_b32 v{40+i}, s{60+2*i}" if i <= n else f"v_mov_b32 v{40+i}, 0")
        a(f"""
        s_lshl_b32 s40, s2, 2
        s_add_u32 s40, s40, s26
        s_lshl_b32 s40, s40, 6
        s_add_u32 s40, s40, {STAMP + (0 if role[0] == 'c' else 256*4*64)}
        v_mov_b32 v1, s40
        s_mov_b64 exec, 1
        global_store_dwordx4 v1, v[40:43], s[22:23]
        global_store_dwordx4 v1, v[44:47], s[22:23] offset:16
        global_store_dwordx4 v1, v[48:51], s[22:23] offset:32
        global_store_dwordx4 v1, v[52:55], s[22:23] offset:48
        """)
    def unp(dst, src): a(f"v_lshlrev_b32 v{dst}, 16, v{src}\nv_and_b32 v{dst+1}, 0xffff0000, v{src}")
    K0, V0, W0 = 128, 140, 148
    KVP, Q0, DD = 16, 24, 32
    ACC, BR, NB, AF = 36, 68, 12, 128
    BA, YA = 116, 120
    stamp(0)
    a(f"""
    s_load_dwordx16 s[4:19], s[0:1], 0
    s_load_dwordx2 s[22:23], s[0:1], 104
    s_load_dwordx2 s[20:21], s[0:1], 88
    s_cmp_ge_u32 s2, 256
    s_cbranch_scc1 L_exit
    v_lshrrev_b32 v2, 6, v0
    v_and_b32 v1, 15, v0
    v_readfirstlane_b32 s26, v2
    s_and_b32 s24, s2, 7
    s_lshr_b32 s25, s2, 3
    s_cmp_ge_u32 s26, 4
    s_cbranch_scc1 L_fnet
    s_getpc_b64 s[30:31]
    L_pc:
    v_lshlrev_b32 v3, 7, v0
    v_min_u32 v3, L_code_end-L_pc-4, v3
    global_load_dword v255, v3, s[30:31]
    s_lshl_b32 s41, s24, 7
    s_and_b32 s42, s25, 1
    s_lshl_b32 s42, s42, 6
    s_add_u32 s42, s42, s41
    s_lshr_b32 s43, s25, 1
    s_lshl_b32 s43, s43, 10
    s_add_u32 s42, s42, s43
    v_bfe_u32 v9, v0, 2, 4
    v_lshl_add_u32 v9, v2, 5, v9
    v_and_b32 v15, 3, v0
    v_lshl_add_u32 v10, v15, 4, s42
    v_lshl_add_u32 v9, v9, 14, v10
    v_add_u32 v10, 0x40000, v9
    s_lshl_b32 s43, s26, 11
    s_add_u32 m0, s43, {XT}
    v_lshrrev_b32 v3, 5, v0
    v_and_b32 v4, 31, v0
    s_lshl_b32 s40, s25, 16
    s_add_u32 s40, s40, 4096
    v_lshl_add_u32 v7, v4, 2, s41
    v_lshl_add_u32 v5, v3, 13, s40
    v_add_u32 v5, v5, v7
    v_add_u32 v6, 0xffffe400, v5
    v_lshlrev_b32 v8, 2, v7
    s_mov_b32 s34, 0x200000
    s_mov_b32 s35, 0x20000
    s_waitcnt lgkmcnt(0)
    global_load_lds_dwordx4 v9, s[16:17] {NT}
    s_add_u32 m0, s43, {XT+1024}
    s_mov_b64 s[32:33], s[6:7]
    global_load_lds_dwordx4 v10, s[16:17] {NT}
    {"s_barrier" if cfg.b0 else ""}
    global_load_dwordx4 {vr(W0,4)}, v8, s[10:11]
    """)
    stamp(1)
    for j in range(3):
        a(f"buffer_load_dword v{K0+j}, v6, s[32:35], 0 offen offset:{1024*j} {NT}")
    for j in range(8):
        a(f"global_load_dword v{K0+3+j}, v5, s[6:7] offset:{1024*j-4096} {NT}")
    for j in range(8):
        a(f"global_load_dword v{V0+j}, v5, s[8:9] offset:{1024*j-4096} {NT}")
    if cfg.conv_prio: a(f"s_setprio {cfg.conv_prio}")
    a(f"""
    s_add_u32 s44, s22, {FE}
    s_addc_u32 s45, s23, 0
    s_load_dword s27, s[44:45], 0
    s_mov_b32 s58, 0
    s_getreg_b32 s28, hwreg(HW_REG_XCC_ID, 0, 4)
    s_waitcnt vmcnt(20)
    s_barrier
    """)
    stamp(2)
    a(f"""
    s_lshr_b32 s48, s26, 1
    s_and_b32 s49, s26, 1
    s_lshl_b32 s40, s24, 18
    s_lshl2_add_u32 s41, s25, s26
    s_lshl_b32 s41, s41, 11
    s_add_u32 s41, s41, s40
    v_bfe_u32 v3, v0, 4, 2
    v_lshl_add_u32 v9, v1, 6, s41
    v_bfe_u32 v13, v0, 4, 1
    v_lshl_add_u32 v9, v13, 5, v9
    v_bfe_u32 v12, v0, 5, 1
    v_lshl_add_u32 v9, v12, 4, v9
    s_lshl_b32 s42, s25, 2
    v_mov_b32 v10, s42
    v_lshlrev_b32 v11, 2, v4
    v_and_b32 v2, 63, v0
    s_lshl_b32 s41, s25, 6
    s_add_u32 s51, s40, s41
    v_lshlrev_b32 v13, 1, v13
    v_xor_b32 v13, v13, v15
    v_lshl_add_u32 v13, v13, 4, s51
    v_bfe_u32 v14, v0, 2, 4
    v_lshl_add_u32 v14, v14, 11, v13
    s_lshl_b32 s41, s26, 16
    v_add_u32 v14, s41, v14
    v_sub_u32 v12, 3, v15
    v_add_u32 v15, 0x8000, v14
    v_mul_u32_u24 v12, {HCS}, v12
    v_or_b32 v13, 3, v1
    v_lshl_add_u32 v12, v13, 1, v12
    v_lshl_add_u32 v12, v3, 4, v12
    s_mul_i32 s42, s48, {HCH}
    s_lshl_b32 s41, s49, 8
    s_add_u32 s42, s42, s41
    s_add_u32 s42, s42, {HC+2}
    v_add_u32 v12, s42, v12
    s_lshl_b32 s41, s49, 4
    s_sub_u32 s41, 33, s41
    v_lshl_add_u32 v13, v1, 1, s41
    v_sub_u32 v13, v13, v3
    """)
    for rr in range(4):
        a(f"""
        v_lshrrev_b32 v124, 1, v13
        v_bfe_u32 v125, v13, 3, 1
        v_xor_b32 v125, s48, v125
        v_lshl_add_u32 v124, v124, 1, v125
        v_and_b32 v125, 1, v13
        v_lshl_add_u32 v124, v124, 1, v125
        v_lshlrev_b32 v{BA+rr}, 4, v124
        {"v_add_u32 v13, -4, v13" if rr < 3 else ""}
        """)
    a(f"""
    s_lshl_b32 s50, s26, 11
    s_add_u32 s50, s50, {XI+1024}
    s_mov_b32 s52, 0
    s_mov_b32 s53, 0
    s_mov_b32 m0, s50
    s_lshl_b32 s41, s26, 12
    s_add_u32 s41, s41, {PX}
    v_lshl_add_u32 v8, v2, 4, s41
    s_xor_b32 s41, s26, 1
    s_lshl_b32 s41, s41, 12
    s_add_u32 s41, s41, {PX}
    v_lshl_add_u32 v6, v2, 4, s41
    s_lshl_b32 s42, s24, 12
    s_add_u32 s42, s42, {CF}
    s_add_u32 s46, s22, s42
    s_addc_u32 s47, s23, 0
    """)
    WP, KF, VF, AC = 152, 160, 184, 200
    a("s_waitcnt vmcnt(19)")
    for j in range(4):
        for ch in range(2):
            src = W0 + 2*ch + (j >> 1)
            if j & 1: a(f"v_and_b32 v{WP+2*j+ch}, 0xffff0000, v{src}")
            else:     a(f"v_lshlrev_b32 v{WP+2*j+ch}, 16, v{src}")
    def rows(ns):
        for j in (3, 2, 1, 0):
            for n in ns:
                k = vr(KF + 2*(n + 3 - j), 2); w = vr(WP + 2*j, 2); d = vr(AC + 2*n, 2)
                if j == 3: a(f"v_pk_mul_f32 {d}, {k}, {w}")
                else:      a(f"v_pk_fma_f32 {d}, {k}, {w}, {d}")
    a("s_waitcnt vmcnt(12)")
    for n in range(7): unp(KF+2*n, K0+n)
    rows(range(4))
    a("s_waitcnt vmcnt(8)")
    stamp(3)
    for n in range(7, 11): unp(KF+2*n, K0+n)
    rows(range(4, 8))
    a("s_waitcnt vmcnt(4)")
    for n in range(4): unp(VF+2*n, V0+n)
    for n in range(4): a(f"v_pk_mul_f32 {vr(AC+2*n,2)}, {vr(AC+2*n,2)}, {vr(VF+2*n,2)}")
    for ch in range(2):
        for q in (2, 3):
            a(f"v_cvt_pk_bf16_f32 v{KVP+4*ch+q}, v{AC+2*(7-2*q)+ch}, v{AC+2*(6-2*q)+ch}")
    for q in (2, 3): a(f"v_permlane16_swap_b32 v{KVP+q}, v{KVP+4+q}")
    a("s_waitcnt vmcnt(0)")
    for n in range(4, 8): unp(VF+2*n, V0+n)
    for n in range(4, 8): a(f"v_pk_mul_f32 {vr(AC+2*n,2)}, {vr(AC+2*n,2)}, {vr(VF+2*n,2)}")
    for q in (0, 1):
        for ch in range(2):
            a(f"v_cvt_pk_bf16_f32 v{KVP+4*ch+q}, v{AC+2*(7-2*q)+ch}, v{AC+2*(6-2*q)+ch}")
    for q in (0, 1): a(f"v_permlane16_swap_b32 v{KVP+q}, v{KVP+4+q}")
    for n in range(2):
        a(f"global_store_dwordx4 v9, {vr(KVP+4*n,4)}, s[22:23] offset:{1024*n} {cfg.kvflag}")
    stamp(4)
    a(f"""
    s_barrier
    s_waitcnt lgkmcnt(0)
    s_mul_i32 s27, s27, 0x9e3779b1
    s_add_u32 s27, s27, 0x7f4a7c15
    {"s_and_b32 s28, s25, 1" if cfg.force_slow else ""}
    s_xor_b32 s29, s27, s28
    v_mov_b32 v33, s29
    s_cmp_lg_u32 s49, 0
    s_cbranch_scc1 L_convB
    """)
    slow_stubs = []
    def conv_variant(own, foreign, tg):
        a(f"""
        s_mov_b64 exec, 1
        s_waitcnt vmcnt(0)
        s_barrier
        global_store_dword v10, v33, s[46:47] offset:{CF_KV}
        s_mov_b64 exec, -1
        """)
        stamp(5)
        a(f"global_load_dword v34, v11, s[46:47] offset:{CF_KV} sc1")
        seq = []
        for ph, tiles in ((0, foreign), (1, own)):
            for v in range(max(tiles) + 1):
                for rr in range(4):
                    seq.append((ph, v, rr, [j for j in tiles if j >= v]))
        aorder = []
        for (ph, v, rr, tiles) in seq:
            for j in tiles:
                if (j - v, rr) not in aorder: aorder.append((j - v, rr))
        areads = []
        for (u, rr) in aorder:
            f = AF + 4*(4*u + rr)
            areads.append(((u, rr, 0), f"ds_read_b64 {vr(f,2)}, v12 offset:{512*u+64*rr}"))
            areads.append(((u, rr, 1), f"ds_read_b64 {vr(f+2,2)}, v12 offset:{512*u+64*rr+8}"))
        lg = Lgkm(a)
        atok = {}
        def ard(n):
            for _ in range(n):
                if areads:
                    k, t = areads.pop(0)
                    atok[k] = lg.issue(t)
        a(f"""
        L_kvpoll{tg}:
        s_waitcnt vmcnt(0)
        v_cmp_ne_u32 vcc, s29, v34
        s_cbranch_vccz L_kvok{tg}
        s_add_u32 s52, s52, 1
        s_cmp_gt_u32 s52, {cfg.timeout}
        s_cbranch_scc1 L_kvcheck
        L_kvagain{tg}:
        global_load_dword v34, v11, s[46:47] offset:{CF_KV} sc1
        s_branch L_kvpoll{tg}
        L_kvok{tg}:
        global_load_lds_dwordx4 v14, s[22:23] sc1
        s_add_u32 m0, s50, 1024
        s_lshl_b32 s41, s53, 22
        global_load_lds_dwordx4 v15, s[22:23] sc1
        s_barrier
        """)
        stamp(6)
        ard(cfg.apre)
        a(f"""
        s_add_u32 s41, s41, s51
        s_lshl_b32 s42, s48, 5
        s_add_u32 s41, s41, s42
        v_lshl_add_u32 v14, v1, 11, s41
        v_lshl_add_u32 v14, v3, 3, v14
        v_add_u32 v{YA}, {own[0] << 15}, v14
        v_add_u32 v{YA+1}, {own[1] << 15}, v14
        v_add_u32 v{YA+2}, {own[2] << 15}, v14
        v_add_u32 v{YA+3}, {own[3] << 15}, v14
        s_lshl2_add_u32 s41, s26, {FL}
        v_mov_b32 v10, s41
        v_xor_b32 v4, 4, v10
        v_mov_b32 v35, 1
        s_cmp_lg_u32 s53, 0
        s_waitcnt vmcnt(0)
        s_barrier
        """)
        stamp(7)
        PF = cfg.pf
        tok = {}
        def rd(i):
            if i < len(seq):
                ph, v, rr, _ = seq[i]
                tok[i] = lg.issue(f"ds_read_b128 {vr(BR+4*(i % NB),4)}, v{BA+rr} offset:{XI+1024*v}")
        for i in range(PF): rd(i)
        started = set()
        pend = []
        cnt = 0
        pr = {}
        def accreg(ph, j):
            tiles = own if ph else foreign
            return ACC + 16*ph + 4*tiles.index(j)
        def flush(force=False):
            pend.sort(key=lambda x: x[0])
            while pend and (force or pend[0][0] <= cnt):
                pend.pop(0)[1]()
        for j in range(8):
            pend.append((cfg.qat + j, lambda j=j: a(f"global_load_dword v{Q0+j}, v5, s[4:5] offset:{1024*j-4096} {NT}")))
        pend.append((cfg.qat + 8, lambda: a(f"global_load_dword v{DD}, v7, s[14:15]")))
        def fin_foreign(j):
            def f():
                lg.issue(f"ds_write_b128 v8, {vr(accreg(0,j),4)} offset:{1024*foreign.index(j)}")
                if j == max(foreign): lg.issue("ds_write_b32 v10, v35")
            return f
        def px_reads():
            r = [f"ds_read_b32 v34, v4"]
            for t, j in enumerate(own): r.append(f"ds_read_b128 {vr(ACC+4*t,4)}, v6 offset:{1024*t}")
            return r
        def do_px():
            t = None
            for x in px_reads(): t = lg.issue(x)
            pr[0] = t
        def chk_px():
            lg.wait(pr[0])
            a(f"""
            v_cmp_ne_u32 vcc, 1, v34
            s_cbranch_vccnz L_pxretry{tg}
            L_pxok{tg}:
            """)
            slow_stubs.append(f"L_pxretry{tg}:\n" + BOUND + "\n".join(px_reads()) + f"""
            s_waitcnt lgkmcnt(0)
            v_cmp_ne_u32 vcc, 1, v34
            s_cbranch_vccnz L_pxretry{tg}
            s_cmp_lg_u32 s53, 0
            s_branch L_pxok{tg}
            """)
        def fin_own(j):
            t = own.index(j)
            r = accreg(1, j); p = ACC + 4*t
            def f1(): a(f"v_add_f32 v{p}, v{p}, v{r}\nv_add_f32 v{p+1}, v{p+1}, v{r+1}")
            def f2(): a(f"v_add_f32 v{p+2}, v{p+2}, v{r+2}\nv_add_f32 v{p+3}, v{p+3}, v{r+3}")
            def f3(): a(f"v_cvt_pk_bf16_f32 v{p}, v{p}, v{p+1}\nv_cvt_pk_bf16_f32 v{p+1}, v{p+2}, v{p+3}")
            def f4():
                ad = f"v{YA+t}"
                off = 0
                a(f"""
                s_cbranch_scc1 L_ys_{tg}{j}
                global_store_dwordx2 {ad}, {vr(p,2)}, s[22:23] offset:{off} {cfg.xflag}
                L_yr_{tg}{j}:
                """)
                slow_stubs.append(f"""
                L_ys_{tg}{j}:
                global_store_dwordx2 {ad}, {vr(p,2)}, s[22:23] offset:{off} sc1
                s_branch L_yr_{tg}{j}
                """)
            return [f1, f2, f3, f4]
        lastown = [0]
        for i, (ph, v, rr, tiles) in enumerate(seq):
            lg.wait(tok[i])
            for n, j in enumerate(tiles):
                d = vr(accreg(ph, j), 4)
                c = d if (ph, j) in started else "0"
                started.add((ph, j))
                while (j - v, rr, 1) not in atok: ard(1)
                lg.wait(atok[(j - v, rr, 1)])
                a(f"v_mfma_f32_16x16x32_bf16 {d}, {vr(AF+4*(4*(j-v)+rr),4)}, {vr(BR+4*(i % NB),4)}, {c}")
                cnt += 1
                if n == 0: rd(i + PF); ard(cfg.aper - 1)
                else: ard(cfg.aper)
                flush()
            if rr == 3 and v in tiles:
                if ph == 0:
                    pend.append((cnt + 5, fin_foreign(v)))
                    if v == max(foreign):
                        pend.append((cnt + 20, do_px)); pend.append((cnt + 31, chk_px))
                else:
                    base = max(cnt + 5, 72 + 32, lastown[0] + 1)
                    for n, f in enumerate(fin_own(v)): pend.append((base + n, f))
                    lastown[0] = base + 3
        flush(True)
        stamp(8)
        QF, QT = 128, 144
        a(f"""
        s_lshl_b32 s54, s53, 10
        s_lshl_b32 s40, s49, 8
        s_add_u32 s40, s40, s54
        s_lshl3_add_u32 s40, s25, s40
        s_lshl2_add_u32 s40, s48, s40
        v_mov_b32 v10, s40
        s_lshr_b32 s40, s25, 2
        s_add_u32 s40, s40, 1
        s_bfe_u32 s40, s40, 0x10001
        s_lshl_b32 s40, s40, 8
        s_add_u32 s40, s40, s54
        v_lshl_add_u32 v11, v2, 2, s40
        s_lshl_b32 s40, s53, 21
        v_add_u32 v9, s40, v9
        v_lshlrev_b32 v12, 1, v5
        v_sub_u32 v12, v12, v7
        v_add_u32 v12, 0xfffff000, v12
        v_add_u32 v13, 8192, v12
        """)
        for q in range(4): a(f"v_permlane16_swap_b32 v{KVP+q}, v{KVP+4+q}")
        for ch in range(2):
            for q in range(4):
                a(f"v_lshlrev_b32 v{QT+2*(7-2*q)+ch}, 16, v{KVP+4*ch+q}\nv_and_b32 v{QT+2*(6-2*q)+ch}, 0xffff0000, v{KVP+4*ch+q}")
        a(f"""
        s_cmp_lg_u32 s53, 0
        s_mov_b64 exec, 1
        s_waitcnt vmcnt(0)
        s_cbranch_scc1 L_yf_slow{tg}
        global_store_dword v10, v33, s[46:47] offset:{CF_Y}
        L_yf_back{tg}:
        s_mov_b64 exec, -1
        """)
        slow_stubs.append(f"""
        L_yf_slow{tg}:
        global_store_dword v10, v33, s[46:47] offset:{CF_Y} sc1
        s_branch L_yf_back{tg}
        """)
        stamp(9)
        a(f"global_load_dword v34, v11, s[46:47] offset:{CF_Y} sc1")
        unp(36, DD)
        for n in range(8): unp(QF+2*n, Q0+n)
        for n in range(8): a(f"v_pk_mul_f32 {vr(QT+2*n,2)}, {vr(QT+2*n,2)}, v[36:37]")
        for n in range(8): a(f"v_pk_mul_f32 {vr(QT+2*n,2)}, {vr(QT+2*n,2)}, {vr(QF+2*n,2)}")
        a(f"""
        L_ypoll{tg}:
        s_waitcnt vmcnt(0)
        v_cmp_ne_u32 vcc, s29, v34
        s_cbranch_vccz L_yok{tg}
        {BOUND}
        global_load_dword v34, v11, s[46:47] offset:{CF_Y} sc1
        s_branch L_ypoll{tg}
        L_yok{tg}:
        """)
        YL, YF = 40, 48
        a(f"""
        global_load_dwordx4 {vr(YL,4)}, v9, s[22:23] sc1
        global_load_dwordx4 {vr(YL+4,4)}, v9, s[22:23] offset:1024 sc1
        """)
        stamp(10)
        a("s_waitcnt vmcnt(0)")
        stamp(11)
        for q in range(4): a(f"v_permlane16_swap_b32 v{YL+q}, v{YL+4+q}")
        for q in range(4):
            a(f"v_lshlrev_b32 v{YF+4*q}, 16, v{YL+q}\nv_and_b32 v{YF+4*q+2}, 0xffff0000, v{YL+q}")
            a(f"v_lshlrev_b32 v{YF+4*q+1}, 16, v{YL+4+q}\nv_and_b32 v{YF+4*q+3}, 0xffff0000, v{YL+4+q}")
            for n in (2*q, 2*q+1):
                a(f"v_pk_fma_f32 {vr(YF+2*n,2)}, {vr(YF+2*n,2)}, {vr(QF+2*n,2)}, {vr(QT+2*n,2)}")
            for n in (2*q, 2*q+1):
                a(f"v_cvt_pk_bf16_f32 v{YF+2*n}, v{YF+2*n}, v{YF+2*n+1}")
            for n in (2*q, 2*q+1):
                a(f"global_store_dword {'v12' if n < 4 else 'v13'}, v{YF+2*n}, s[20:21] offset:{2048*(n&3)-4096} {cfg.out_flag}")
        stamp_out(12)
        a("s_endpgm")
    conv_variant(S0, S1, "A")
    a("L_convB:")
    conv_variant(S1, S0, "B")
    C1, BD, A1 = 16, 48, 80
    HD, HE, T = 128, 136, 140
    C0, CS1, TWC, TWS, CS2 = 192, 200, 208, 216, 224
    a("L_fnet:")
    role[0] = 'f'
    if cfg.b0: a("s_barrier")
    stamp(1)
    if cfg.fnet_prio: a(f"s_setprio {cfg.fnet_prio}")
    a(f"""
    v_and_b32 v0, 255, v0
    s_and_b32 s26, s26, 3
    v_and_b32 v2, 3, v2
    s_mov_b32 s58, 0
    s_and_b32 s40, s25, 1
    s_lshl1_add_u32 s40, s24, s40
    s_lshr_b32 s41, s25, 1
    s_waitcnt lgkmcnt(0)
    s_add_u32 s44, s22, {FE}
    s_addc_u32 s45, s23, 0
    s_load_dword s27, s[44:45], 0
    v_bfe_u32 v3, v0, 1, 4
    v_lshl_add_u32 v3, v2, 4, v3
    v_and_b32 v4, 1, v0
    v_bfe_u32 v5, v0, 5, 1
    v_mul_u32_u24 v6, s41, v3
    v_lshl_add_u32 v6, v4, 9, v6
    v_lshlrev_b32 v7, 4, v3
    v_and_b32 v8, 0xdf, v0
    v_cmp_eq_u32 vcc, 1, v8
    v_mov_b32 v9, 0x400
    v_cndmask_b32 v6, v6, 0, vcc
    v_cndmask_b32 v7, v7, v9, vcc
    v_lshlrev_b32 v9, 3, v5
    v_mad_u32_u24 v6, v9, v7, v6
    v_cvt_f32_u32 v6, v6
    v_cvt_f32_u32 v7, v7
    v_mul_f32 v10, {f32(1/2048)}, v6
    v_mul_f32 v7, {f32(1/2048)}, v7
    v_add_f32 v11, v10, v7
    v_add_f32 v12, v7, v7
    v_mov_b32 v13, v12
    v_mul_f32 v14, {f32(10.0)}, v7
    v_mov_b32 v15, v14
    v_and_b32 v8, 2, v0
    v_mul_u32_u24 v8, 0x4000, v8
    v_lshl_or_b32 v8, v8, 16, v8
    """)
    for ks in range(4):
        for i2 in range(4):
            a(f"v_cos_f32 v100, v10\nv_cos_f32 v101, v11")
            if not (ks == 3 and i2 == 3):
                a(f"v_pk_add_f32 v[10:11], v[10:11], {'v[12:13]' if i2 < 3 else 'v[14:15]'}")
            a(f"v_cvt_pk_bf16_f32 v{C1+4*ks+i2}, v100, v101")
    for i in range(16): a(f"v_xor_b32 v{C1+16+i}, v{C1+i}, v8")
    a(f"""
    v_bfe_u32 v3, v0, 2, 2
    v_lshl_add_u32 v3, v5, 3, v3
    v_lshlrev_b32 v3, 6, v3
    v_bfe_u32 v9, v0, 4, 1
    v_lshl_add_u32 v3, v9, 5, v3
    v_and_b32 v9, 3, v0
    v_lshl_add_u32 v3, v9, 3, v3
    v_add_u32 v3, {XT}, v3
    v_lshlrev_b32 v164, 4, v0
    v_add_u32 v11, -8, v164
    s_lshl_b32 s46, s25, 13
    s_lshl_b32 s47, s24, 18
    s_add_u32 s46, s46, s47
    s_add_u32 s47, s46, 4096
    s_mov_b64 s[36:37], s[12:13]
    s_mov_b32 s38, 0x200000
    s_mov_b32 s39, 0x20000
    s_lshl_b32 s42, s24, 12
    s_add_u32 s42, s42, {CF}
    v_lshl_add_u32 v13, v2, 1, v4
    v_lshl_add_u32 v13, v13, 7, s42
    """)
    HL = f"""
    buffer_load_dwordx4 {vr(HD,4)}, v164, s[36:39], s46 offen {NT}
    buffer_load_dwordx4 {vr(HD+4,4)}, v164, s[36:39], s47 offen {NT}
    s_mov_b64 exec, 1
    buffer_load_dwordx2 {vr(HE,2)}, v11, s[36:39], s46 offen {NT}
    buffer_load_dwordx2 {vr(HE+2,2)}, v11, s[36:39], s47 offen {NT}
    s_mov_b64 exec, 3
    global_load_dword v253, v13, s[22:23] nt
    s_mov_b64 exec, -1
    """
    if cfg.hearly: a(HL)
    a("s_waitcnt lgkmcnt(0)")
    stamp(2)
    a("s_barrier")
    lg = Lgkm(a)
    tk = []
    for ks in range(8):
        lg.issue(f"ds_read_b64_tr_b16 {vr(BD+4*ks,2)}, v3 offset:{1024*ks}")
        tk.append(lg.issue(f"ds_read_b64_tr_b16 {vr(BD+4*ks+2,2)}, v3 offset:{1024*ks+256}"))
    fill = [f"buffer_load_dwordx4 {vr(HD,4)}, v164, s[36:39], s46 offen {NT}",
            f"buffer_load_dwordx4 {vr(HD+4,4)}, v164, s[36:39], s47 offen {NT}",
            f"buffer_load_dwordx2 {vr(HE,2)}, v11, s[36:39], s46 offen {NT}",
            f"buffer_load_dwordx2 {vr(HE+2,2)}, v11, s[36:39], s47 offen {NT}",
            f"global_load_dword v253, v13, s[22:23] nt",
            f"""s_lshl_b32 s42, s26, 19
            s_lshl_b32 s43, s40, 11
            s_add_u32 s42, s42, s43
            s_lshl_b32 s43, s41, 7
            s_add_u32 s42, s42, s43
            s_add_u32 s42, s42, {Z1W}""",
            f"""v_and_b32 v6, 31, v0
            v_lshlrev_b32 v4, 16, v5
            v_lshl_add_u32 v4, v6, 2, v4
            v_add_u32 v4, s42, v4""",
            f"""v_lshrrev_b32 v165, 2, v0
            v_lshl_add_u32 v165, v165, 7, s46
            s_mul_i32 s27, s27, 0x9e3779b1
            s_add_u32 s27, s27, 0x7f4a7c15
            v_mov_b64 v[104:105], 0
            v_mov_b64 v[106:107], 0
            v_add_u32 v9, {XI}, v164
            v_lshrrev_b32 v10, 1, v1
            v_mul_u32_u24 v10, {HCS}, v10"""]
    for ks in range(8):
        lg.wait(tk[ks])
        a(f"v_mfma_f32_32x32x16_bf16 {vr(A1,16)}, {vr(C1+4*ks,4)}, {vr(BD+4*ks,4)}, {vr(A1,16) if ks else 0}")
        if ks >= 5: a(fill[ks])
    if not cfg.hearly: a(HL)
    for j in range(4):
        for b in range(2):
            a(f"v_cvt_pk_bf16_f32 v{BD+2*j+b}, v{A1+4*j+2*b}, v{A1+4*j+2*b+1}")
            a(f"global_store_dword v4, v{BD+2*j+b}, s[22:23] sc1")
            if not (j == 3 and b == 1):
                a(f"v_add_u32 v4, {0x8000 if b == 0 else 0x18000}, v4")
    stamp(3)
    a(f"""
    v_and_b32 v11, 1, v0
    v_lshl_add_u32 v10, v11, 4, v10
    v_cmp_gt_u32 vcc, 64, v0
    v_cndmask_b32 v9, v10, v9, vcc
    v_lshlrev_b32 v10, 4, v11
    v_add_u32 v10, {FL}, v10
    v_cmp_gt_u32 vcc, 128, v0
    v_cndmask_b32 v9, v10, v9, vcc
    ds_write_b128 v9, v[104:107]
    """)
    a(f"""
    s_lshr_b32 s48, s25, 2
    s_lshl3_add_u32 s48, s24, s48
    s_and_b32 s49, s25, 3
    v_bfe_u32 v9, v0, 4, 2
    v_bfe_u32 v7, v0, 2, 2
    s_lshl_b32 s42, s49, 2
    v_add_lshl_u32 v7, v7, s42, 1
    v_bfe_u32 v10, v0, 1, 1
    v_and_b32 v12, v10, v11
    v_lshlrev_b32 v12, 4, v12
    v_mov_b32 v13, -1
    s_cmp_lg_u32 s48, 0
    s_cbranch_scc1 L_generic
    v_add_u32 v7, v7, v10
    v_lshlrev_b32 v12, 3, v10
    v_lshlrev_b32 v13, 4, v10
    v_mov_b32 v14, 0xffff
    v_lshlrev_b32 v13, v13, v14
    L_generic:
    v_lshl_add_u32 v12, v11, 3, v12
    v_lshlrev_b32 v10, 2, v9
    v_mad_u32_u24 v12, v10, v7, v12
    v_cvt_f32_u32 v12, v12
    v_cvt_f32_u32 v7, v7
    v_mul_f32 v12, {f32(1/32)}, v12
    v_mul_f32 v7, {f32(1/32)}, v7
    """)
    for i in range(4):
        a(f"v_cos_f32 v100, v12\nv_sin_f32 v101, v12")
        if i < 3: a("v_add_f32 v12, v12, v7")
        a(f"v_cvt_pk_bf16_f32 v100, v100, v101\nv_and_b32 v{C0+i}, v100, v13")
    a(f"""
    v_mul_u32_u24 v14, 0x8000, v11
    v_lshl_or_b32 v14, v14, 16, v14
    v_mul_u32_u24 v10, v10, v1
    v_cvt_f32_u32 v10, v10
    v_cvt_f32_u32 v11, v1
    v_mul_f32 v12, {f32(1/16)}, v10
    v_mul_f32 v13, {f32(1/16)}, v11
    """)
    for i in range(4):
        a(f"v_cos_f32 v100, v12\nv_sin_f32 v101, v12")
        if i < 3: a("v_add_f32 v12, v12, v13")
        a(f"v_cvt_pk_bf16_f32 v{CS1+i}, v100, v101\nv_cvt_pk_bf16_f32 v{CS1+4+i}, -v101, v100")
    NL = 1 if cfg.prefill == 'l' else 0
    def hcopies():
        for ch in range(2):
            d, e = HD + 4*ch, HE + 2*ch
            w = [e, e+1, d, d+1, d+2, d+3]
            t = T + 12*ch
            o = HC + 32 + ch*HCH
            a(f"ds_write_b128 v164, {vr(d,4)} offset:{o}")
            for i in range(2): a(f"v_mov_b32_dpp v{e+i}, v{d+2+i} wave_shr:1 row_mask:0xf bank_mask:0xf")
            for i in range(4): a(f"v_alignbyte_b32 v{t+i}, v{w[i+2]}, v{w[i+1]}, 2")
            a(f"ds_write_b128 v164, {vr(t,4)} offset:{o+HCS}")
            for i in range(4): a(f"v_mov_b32 v{t+4+i}, v{w[i+1]}")
            a(f"ds_write_b128 v164, {vr(t+4,4)} offset:{o+2*HCS}")
            for i in range(4): a(f"v_alignbyte_b32 v{t+8+i}, v{w[i+1]}, v{w[i]}, 2")
            a(f"ds_write_b128 v164, {vr(t+8,4)} offset:{o+3*HCS}")
    a(f"""
    s_barrier
    {"global_load_dword v254, v165, s[22:23] nt" if NL else ""}
    s_waitcnt vmcnt({NL+9})
    """)
    stamp(4)
    if cfg.hfirst: hcopies()
    a(f"s_waitcnt vmcnt({NL})")
    stamp(5)
    a("s_barrier")
    if not cfg.hfirst: hcopies()
    a(f"v_mul_f32 v12, {f32(1/512)}, v10\nv_mul_f32 v13, {f32(1/512)}, v11")
    for mt in range(2):
        for r in range(4):
            a(f"v_cos_f32 v{TWC+4*mt+r}, v12\nv_sin_f32 v{TWS+4*mt+r}, v12")
            if r < 3: a("v_add_f32 v12, v12, v13")
            elif mt == 0: a(f"v_fmamk_f32 v12, v13, {f32(13.0)}, v12")
    a(f"""
    v_and_b32 v7, 1, v0
    v_lshl_add_u32 v7, v2, 1, v7
    s_lshl3_add_u32 s42, s25, s24
    v_lshl_add_u32 v7, v7, 8, s42
    v_lshlrev_b32 v7, {cfg.zfs}, v7
    v_add_u32 v7, {ZF}, v7
    v_mov_b32 v8, s27
    s_lshl_b32 s42, s24, 5
    s_add_u32 s42, s42, s25
    s_lshl2_add_u32 s42, s42, s26
    s_lshl_b32 s42, s42, {cfg.zfs+1}
    s_add_u32 s42, s42, {ZF}
    s_add_u32 s50, s22, s42
    s_addc_u32 s51, s23, 0
    s_mov_b64 exec, 3
    s_waitcnt lgkmcnt(0)
    """)
    stamp(6)
    a(f"""
    s_barrier
    global_store_dword v7, v8, s[22:23] sc1
    s_mov_b64 exec, -1
    """)
    a(f"v_mul_f32 v12, {f32(1/32)}, v10\nv_mul_f32 v13, {f32(1/32)}, v11")
    for r in range(4):
        a(f"v_cos_f32 v{100+r}, v12\nv_sin_f32 v{104+r}, v12")
        if r < 3: a("v_add_f32 v12, v12, v13")
    for i in range(4): a(f"v_cvt_pk_bf16_f32 v{CS2+i}, v{100+2*i}, v{101+2*i}")
    for i in range(4): a(f"v_xor_b32 v{CS2+4+i}, v{CS2+i}, v14")
    for i in range(8): a(f"v_xor_b32 v{CS2+8+i}, 0x80000000, v{CS2+i}")
    a(f"""
    s_lshl_b32 s42, s48, 15
    s_lshl_b32 s43, s26, 13
    s_add_u32 s42, s42, s43
    s_add_u32 s42, s42, {Z1W+4096}
    v_lshlrev_b32 v10, 9, v9
    v_lshl_add_u32 v4, v1, 2, v10
    v_add_u32 v4, s42, v4
    s_lshl_b32 s42, s26, 9
    s_add_u32 s42, s42, {ZL}
    v_lshlrev_b32 v3, 12, v9
    v_lshl_add_u32 v3, v1, 4, v3
    v_add_u32 v3, s42, v3
    s_barrier
    s_lshl_b32 s42, s26, 12
    s_add_u32 s42, s42, {ZL}
    v_lshl_add_u32 v10, v1, 4, v10
    v_add_u32 v10, s42, v10
    s_lshl2_add_u32 s42, s49, s26
    s_lshl_b32 s42, s42, 7
    s_add_u32 s42, s42, s48
    s_sub_u32 s43, 2048, s42
    s_add_u32 s49, s42, 64
    s_cmp_eq_u32 s48, 0
    s_cselect_b32 s43, s49, s43
    s_lshl_b32 s42, s42, 11
    s_lshl_b32 s43, s43, 11
    v_lshlrev_b32 v12, 5, v1
    v_lshl_add_u32 v12, v9, 3, v12
    v_add_u32 v11, s42, v12
    v_add_u32 v12, s43, v12
    s_lshl2_add_u32 s42, s26, {FL+16}
    v_mov_b32 v13, s42
    v_and_b32 v14, 3, v0
    v_lshlrev_b32 v14, 2, v14
    v_add_u32 v14, {FL+16}, v14
    v_mov_b32 v15, 1
    s_mov_b32 s28, s27
    s_mov_b32 s29, s27
    L_zpoll:
    s_load_dword s52, s[50:51], 0 glc
    s_load_dword s53, s[50:51], {1 << cfg.zfs} glc
    {BOUND}
    s_waitcnt lgkmcnt(0)
    s_cmp_eq_u64 s[52:53], s[28:29]
    s_cbranch_scc0 L_zpoll
    """)
    stamp(7)
    ZD, A0, ZP = 48, 128, 80
    for dl in range(4):
        for hf in range(2):
            for i in range(4):
                a(f"global_load_dword v{ZD+8*dl+4*hf+i}, v4, s[22:23] offset:{2048*dl+64*hf+128*i-4096} sc1")
    def cv(dl, hf):
        for b in range(2):
            r = A0 + 8*dl + 4*hf + 2*b
            a(f"v_cvt_pk_bf16_f32 v{ZP+4*(2*hf+b)+dl}, v{r}, v{r+1}")
    for dl in range(4):
        for hf in range(2):
            a(f"s_waitcnt vmcnt({32-8*dl-4*hf-4})")
            a(f"v_mfma_f32_16x16x32_bf16 {vr(A0+8*dl+4*hf,4)}, {vr(C0,4)}, {vr(ZD+8*dl+4*hf,4)}, 0")
    stamp(8)
    for dl in range(4):
        for hf in range(2): cv(dl, hf)
    for hf in range(2):
        for b in range(2):
            a(f"ds_write_b128 v3, {vr(ZP+4*(2*hf+b),4)} offset:{2048*b+256*hf}")
    ZA, G = 48, 128
    a("ds_write_b32 v13, v15\ns_or_b32 s42, s2, s26\nL_zl:\nds_read_b32 v8, v14")
    for row in range(2):
        for mt in range(2):
            a(f"ds_read_b128 {vr(ZA+8*row+4*mt,4)}, v10 offset:{2048*row+256*mt}")
    a(f"""
    s_waitcnt lgkmcnt(4)
    v_cmp_ne_u32 vcc, 1, v8
    s_cbranch_vccz L_zlok
    {BOUND}
    s_waitcnt lgkmcnt(0)
    s_branch L_zl
    L_zlok:
    """)
    stamp(9)
    n = 0
    for row in range(2):
        for mt in range(2):
            n += 1
            a(f"s_waitcnt lgkmcnt({4-n})")
            for c in range(2):
                a(f"v_mfma_f32_16x16x32_bf16 {vr(G+16*row+8*mt+4*c,4)}, {vr(ZA+8*row+4*mt,4)}, {vr(CS1+4*c,4)}, 0")
    GP, TM, YO = 64, 96, 160
    def fin(row):
        for nt in range(2):
            y = YO+8*row+4*nt
            a(f"v_cvt_pk_bf16_f32 v{y}, v{y}, v{y+1}\nv_cvt_pk_bf16_f32 v{y+1}, v{y+2}, v{y+3}")
            a(f"global_store_dwordx2 v{11+row}, {vr(y,2)}, s[20:21] offset:{1024+512*nt} {cfg.out_flag}")
    for row in range(2):
        for mt in range(2):
            re, im = G+16*row+8*mt, G+16*row+8*mt+4
            for h in range(2):
                tc = vr(TWC+4*mt+2*h, 2)
                a(f"v_pk_mul_f32 {vr(TM+4*h,2)}, {vr(re+2*h,2)}, {tc}")
                a(f"v_pk_mul_f32 {vr(TM+4*h+2,2)}, {vr(im+2*h,2)}, {tc}")
            for h in range(2):
                ts = vr(TWS+4*mt+2*h, 2)
                a(f"v_pk_fma_f32 {vr(TM+4*h,2)}, {vr(im+2*h,2)}, {ts}, {vr(TM+4*h,2)}")
                a(f"v_pk_fma_f32 {vr(TM+4*h+2,2)}, {vr(re+2*h,2)}, {ts}, {vr(TM+4*h+2,2)} neg_lo:[1,0,0] neg_hi:[1,0,0]")
            p = GP + 8*row + 4*mt
            for h in range(2):
                a(f"v_cvt_pk_bf16_f32 v{p+h}, v{TM+4*h}, v{TM+4*h+1}")
                a(f"v_cvt_pk_bf16_f32 v{p+2+h}, v{TM+4*h+2}, v{TM+4*h+3}")
            if (row, mt) == (1, 0): fin(0)
            for nt in range(2):
                d = vr(YO+8*row+4*nt, 4)
                a(f"v_mfma_f32_16x16x32_bf16 {d}, {vr(p,4)}, {vr(CS2+8*nt+4*mt,4)}, {d if mt else 0}")
    a(f"""
    s_cmp_lg_u32 s42, 0
    s_cbranch_scc1 L_noepoch
    v_mov_b32 v8, s27
    v_mov_b32 v7, 0
    s_mov_b64 exec, 1
    global_store_dword v7, v8, s[44:45]
    s_mov_b64 exec, -1
    L_noepoch:
    s_nop 5
    """)
    fin(1)
    stamp_out(10)
    a("L_exit:\ns_endpgm")
    a("L_code_end:")
    a(f"""
    L_kvcheck:
    {BOUND}
    s_xor_b32 s55, s27, 0x5bd1e995
    v_mov_b32 v34, s55
    v_mov_b32 v35, s29
    s_lshl_b32 s40, s25, 3
    v_mov_b32 v36, s40
    s_mov_b64 exec, 1
    global_store_dwordx2 v36, v[34:35], s[46:47] offset:{CF_HELLO} sc1
    s_mov_b64 exec, -1
    v_and_b32 v36, 31, v0
    v_lshlrev_b32 v36, 3, v36
    global_load_dwordx2 v[34:35], v36, s[46:47] offset:{CF_HELLO} sc1
    s_waitcnt vmcnt(0)
    v_cmp_eq_u32 s[56:57], s55, v34
    v_cmp_ne_u32 vcc, s29, v35
    s_and_b64 s[56:57], s[56:57], vcc
    v_xor_b32 v35, s27, v35
    v_cmp_gt_u32 vcc, 16, v35
    s_and_b64 s[56:57], s[56:57], vcc
    s_cbranch_scc1 L_goslow
    s_sleep 8
    s_cmp_lg_u32 s49, 0
    s_cbranch_scc1 L_kvagainB
    s_branch L_kvagainA
    L_goslow:
    s_mov_b32 s53, 1
    s_mov_b32 s29, s27
    v_mov_b32 v33, s27
    v_add_u32 v9, {KVS}, v9
    v_add_u32 v14, {KVS}, v14
    v_add_u32 v15, {KVS}, v15
    global_store_dwordx4 v9, {vr(KVP,4)}, s[22:23] sc1
    global_store_dwordx4 v9, {vr(KVP+4,4)}, s[22:23] offset:1024 sc1
    s_lshl2_add_u32 s40, s25, s26
    s_lshl_b32 s40, s40, 2
    v_mov_b32 v36, s40
    v_lshlrev_b32 v37, 3, v2
    s_waitcnt vmcnt(0)
    s_mov_b64 exec, 1
    global_store_dword v36, v33, s[46:47] offset:{CF_SLOW+CF_KV} sc1
    s_mov_b64 exec, -1
    L_kvslowpoll:
    global_load_dwordx2 v[34:35], v37, s[46:47] offset:{CF_SLOW+CF_KV} sc1
    s_waitcnt vmcnt(0)
    v_cmp_ne_u32 vcc, s29, v34
    v_cmp_ne_u32 s[56:57], s29, v35
    s_or_b64 vcc, vcc, s[56:57]
    s_cbranch_scc0 L_kvslowok
    {BOUND}
    s_sleep 8
    s_branch L_kvslowpoll
    L_kvslowok:
    s_cmp_lg_u32 s49, 0
    s_cbranch_scc1 L_kvokB
    s_branch L_kvokA
    """)
    for s in slow_stubs: a(s)
    hdr = open("concat_heads__ssm_conv_h3__spectral_fnet__prompt.s.ref").read().split("; Override")[0]
    txt = hdr + f"; @launch grid=(256,1,1) block=(512,1,1) lds={LDS_BYTES}\n"
    txt += f""".amdgcn_target "amdgcn-amd-amdhsa--gfx950"
.text
.globl {KN}
.p2align 8
.type {KN},@function
{KN}:
""" + a.text() + f""".section .rodata,"a"
.p2align 6
.amdhsa_kernel {KN}
  .amdhsa_next_free_vgpr 256
  .amdhsa_next_free_sgpr 96
  .amdhsa_accum_offset 256
  .amdhsa_group_segment_fixed_size 0
  .amdhsa_kernarg_size 112
  .amdhsa_user_sgpr_count 2
  .amdhsa_user_sgpr_kernarg_segment_ptr 1
  .amdhsa_system_sgpr_workgroup_id_x 1
  .amdhsa_float_denorm_mode_32 3
.end_amdhsa_kernel
"""
    return txt, a

if __name__ == "__main__":
    cfg = Cfg()
    out = sys.argv[1]
    for kv in sys.argv[2:]:
        k, v = kv.split("=")
        cur = getattr(cfg, k)
        setattr(cfg, k, (v == "1") if isinstance(cur, bool) else type(cur)(v))
    txt, a = gen(cfg)
    open(out, "w").write(txt)
    print("instructions:", sum(1 for i in a.ins if not (i.label or i.directive)), "pad states:", a.pads)
```

```python
import re

def vr(base, n=1):
    return f"v{base}" if n == 1 else f"v[{base}:{base+n-1}]"
def sr(base, n=1):
    return f"s{base}" if n == 1 else f"s[{base}:{base+n-1}]"

_REG = re.compile(r"(?<![\w.])(-?)(?:abs\()?([vsa])(?:(\d+)|\[(\d+):(\d+)\])")

def regs_of(tok):
    out = []
    tok = tok.strip()
    if tok in ("vcc", "exec", "m0"):
        return [(tok, 0)]
    for m in _REG.finditer(tok):
        k = m.group(2)
        if m.group(3) is not None:
            out.append((k, int(m.group(3))))
        else:
            out += [(k, i) for i in range(int(m.group(4)), int(m.group(5)) + 1)]
    return out

TRANS = ("v_cos_f32", "v_sin_f32", "v_rcp_f32", "v_exp_f32", "v_log_f32", "v_rsq_f32", "v_sqrt_f32")

class Ins:
    def __init__(self, text):
        self.text = text
        t = text.split(";")[0].strip()
        self.label = t.endswith(":")
        self.directive = t.startswith(".") or t == ""
        self.op = t.split()[0] if t and not self.label else ""
        rest = t[len(self.op):].strip() if self.op else ""
        ops, depth, cur = [], 0, ""
        for ch in rest:
            if ch in "[(": depth += 1
            if ch in "])": depth -= 1
            if ch == "," and depth == 0:
                ops.append(cur); cur = ""
            else:
                cur += ch
        if cur.strip(): ops.append(cur)
        if ops:
            ops[-1] = ops[-1].strip().split(" ")[0]
        self.ops = [o.strip() for o in ops]
        op = self.op
        self.mfma = op.startswith("v_mfma")
        self.valu = op.startswith("v_") and not self.mfma
        self.trans = op.replace("_e32", "").replace("_e64", "") in TRANS
        self.ds = op.startswith("ds_")
        self.vmem = op.startswith(("buffer_", "global_"))
        self.salu = op.startswith("s_")
        self.lds_dma = self.vmem and (" lds" in t or "load_lds" in op)
        self.w, self.r = set(), set()
        R = lambda i: set(regs_of(self.ops[i])) if i < len(self.ops) else set()
        allr = lambda a: set().union(*[R(i) for i in range(a, len(self.ops))]) if len(self.ops) > a else set()
        self.srcc = set(); self.ab = set(); self.stdata = set()
        if self.mfma:
            self.w = R(0); self.r = allr(1); self.srcc = R(3); self.ab = R(1) | R(2)
            self.passes = 8 if "32x32" in op else 4
        elif self.valu:
            self.w = R(0); self.r = allr(1)
            if op.startswith(("v_fmac", "v_dot2c", "v_pk_fmac")): self.r |= R(0)
            if (op.startswith("v_permlane") and "swap" in op) or op.startswith("v_swap"):
                self.w = R(0) | R(1); self.r = R(0) | R(1)
            if op.startswith("v_cmpx"): self.w |= {("exec", 0)}
            if op.startswith(("v_add_co", "v_addc_co", "v_sub_co")): self.w |= R(1)
        elif self.ds:
            if op.startswith(("ds_read", "ds_bpermute", "ds_permute", "ds_swizzle")):
                self.w = R(0); self.r = allr(1)
            else:
                self.r = allr(0)
        elif self.vmem:
            if self.lds_dma:
                self.r = allr(0) | {("m0", 0)}
            elif "load" in op:
                self.w = R(0); self.r = allr(1)
            else:
                self.r = allr(0)
                if "x4" in op or "x3" in op:
                    self.stdata = R(0) if op.startswith("buffer_") else R(1)
        elif self.salu:
            if op.startswith(("s_cmp", "s_cbranch", "s_branch", "s_waitcnt", "s_barrier", "s_nop", "s_sleep", "s_setprio", "s_endpgm", "s_bitcmp")):
                self.r = allr(0)
            else:
                self.w = R(0); self.r = allr(1)
                if "saveexec" in op: self.w |= {("exec", 0)}
    def states(self):
        if self.label or self.directive: return 0
        if self.op == "s_nop": return int(self.ops[0], 0) + 1
        return 1

def need(p, c):
    n = 0
    pv = {x for x in p.w if x[0] in "va" and len(x[0]) == 1}
    ps = {x for x in p.w if x[0] == "s" or x[0] == "vcc"}
    if p.valu:
        if c.mfma and (pv & c.r): n = max(n, 2)
        if c.op.startswith(("v_readfirstlane", "v_readlane")) and (pv & c.r): n = max(n, 1)
        if c.op.startswith("v_permlane") and (pv & c.r): n = max(n, 2)
        if p.trans and c.valu and (pv & c.r): n = max(n, 1)
        if p.trans and (c.vmem or c.ds) and (pv & c.r): n = max(n, 1)
        if c.vmem and (ps & c.r): n = max(n, 5)
        if c.valu and (ps & c.r): n = max(n, 2)
        if c.valu and c.op.startswith("v_cndmask") and ("vcc", 0) in ps: n = max(n, 2)
        if c.salu and (ps & c.r): n = max(n, 1)
        if ("exec", 0) in p.w and c.mfma: n = max(n, 4)
        if "dpp" in c.text and (pv & c.r): n = max(n, 2)
        if ("op_sel" in p.text and not p.op.startswith("v_pk")) and c.valu and (pv & (c.r | c.w)): n = max(n, 1)
    if p.mfma:
        big = 12 if p.passes == 8 else 8
        if c.mfma:
            if p.w & c.ab: n = max(n, big)
            if p.w & c.srcc:
                if not (p.w == c.srcc and p.passes == c.passes): n = max(n, big - 2)
            elif p.w & c.w: n = max(n, big)
        else:
            if p.w & (c.r | c.w): n = max(n, big)
            if c.valu and (p.srcc & c.w): n = max(n, 7 if p.passes == 8 else 3)
    if p.stdata and (p.stdata & c.w): n = max(n, 2)
    if p.salu and ("m0", 0) in p.w and c.lds_dma: n = max(n, 1)
    return n

class Asm:
    def __init__(self):
        self.ins = []
        self.pads = 0
    def __call__(self, text):
        for line in text.split("\n"):
            line = line.rstrip()
            if line.strip() == "": continue
            self.add(line.strip())
    def add(self, line):
        c = Ins(line)
        if not (c.label or c.directive):
            dist, pad = 0, 0
            for p in reversed(self.ins):
                if dist >= 12: break
                if not (p.label or p.directive):
                    pad = max(pad, need(p, c) - dist)
                dist += p.states()
            if pad > 0:
                self.pads += pad
                self.ins.append(Ins(f"s_nop {pad-1}"))
        self.ins.append(c)
    def text(self):
        return "\n".join((i.text if i.label or i.directive else "    " + i.text) for i in self.ins) + "\n"

class Lgkm:
    def __init__(self, a):
        self.a = a; self.n = 0; self.done = 0
    def issue(self, text):
        self.a(text); self.n += 1
        return self.n
    def wait(self, tok):
        if tok <= self.done: return
        k = min(self.n - tok, 14)
        self.a(f"s_waitcnt lgkmcnt({k})")
        self.done = self.n - k

class Vm:
    def __init__(self, a):
        self.a = a; self.n = 0; self.done = 0
    def issue(self, text):
        self.a(text); self.n += 1
        return self.n
    def cnt(self, tok):
        self.done = max(self.done, tok)
        assert self.n - tok < 63
        return f"vmcnt({self.n - tok})"
    def wait(self, tok):
        if tok <= self.done: return
        self.a(f"s_waitcnt {self.cnt(tok)}")

def check_inflight(a):
    import re as _re
    vq, lq = [], []
    bad = []
    for ins in a.ins:
        if ins.label or ins.directive: continue
        if ins.op in ("s_endpgm", "s_branch"):
            vq, lq = [], []; continue
        if ins.op == "s_waitcnt":
            m = _re.search(r"vmcnt\((\d+)\)", ins.text)
            if m: vq = vq[max(0, len(vq) - int(m.group(1))):] if int(m.group(1)) else []
            m = _re.search(r"lgkmcnt\((\d+)\)", ins.text)
            if m:
                n = int(m.group(1))
                lq = [] if n == 0 else [x for x in lq if x[2]] + [x for x in lq if not x[2]][-n:]
            continue
        touched = ins.r | ins.w
        for q in (vq, lq):
            for e in q:
                if e[0] & touched and not (ins.text == e[1]):
                    bad.append((ins.text, e[1]))
        if ins.vmem: vq.append((set(ins.w), ins.text))
        elif ins.ds: lq.append((set(ins.w), ins.text, False))
        elif ins.op.startswith(("s_load", "s_memtime", "s_memrealtime")): lq.append((set(ins.w), ins.text, True))
    return bad
```

```python
import sys, struct
from asmlib import *

KN = "concat_heads__ssm_conv_h3__spectral_fnet__prompt_kernel"
def f32(x): return "0x%08x" % struct.unpack("<I", struct.pack("<f", x))[0]

class Cfg:
    stamps = False
    cyc = False
    probe = ''
    zfs = 7
    timeout = 64
    force_slow = False
    out_flag = "nt"
    xflag = "nt"
    conv_prio = 0
    fnet_prio = 0
    pf = 5
    apre = 40
    aper = 1
    z32 = 1
    gperm = 0
    xrot = 0
    align = 0
    zld = 'sc1'
    poll_at = 112
    zgate = 2
    touch = 0
    fpre = 0
    addr_at = 0
    npre = 2
    cpf = 2
    lead = 9
    px_at = 90
    nos = 0
    gxor = 0
    nmid = 1
    hpos = 0
    aux_prio = 0
    aux_drop = 1
    gate = 138
    zlsleep = 1
    lzpos = 0
    pflag = 'nt'
    qpos = 0
    sflag = ''
    ppos = 1
    zearly = 0
    nofnet2 = False

KVF = 0x000000
ZF = 0x200000
CF = 0x240000
FE = 0x250000
Z1W = 0x280000
SPARE = 0x480000
KVS = 0x600000
CF_KV, CF_Z, CF_Y = 0, 512, 1024
CF_SLOW = 1536
CF_HELLO = 3072
STAMP = 0x4000000
HC, HCS, HCH = 0, 4160, 16640
XI, XIS = 33280, 4672
PX = XI + 2*XIS
XT = PX + 16384
ZL = XT + 8192
FL = ZL + 16384
LDS_BYTES = FL + 128
S0, S1 = (0, 3, 4, 7), (1, 2, 5, 6)
SENT = 0x7f817f81
BOUND = "s_add_u32 s58, s58, 1\ns_cmp_gt_u32 s58, 0x40000\ns_cbranch_scc1 L_exit\n"
TAG = "s_mul_i32 s27, s27, 0x9e3779b1\ns_add_u32 s27, s27, 0x7f4a7c15\n"

def gen(cfg):
    a = Asm()
    role = ['c']
    uid = [0]
    extra = set()
    def stamp(i):
        extra.add((role[0], i))
        if cfg.stamps or (cfg.probe and (i == 0 or cfg.probe == role[0] + str(i))):
            a(f"{'s_memtime' if cfg.cyc else 's_memrealtime'} s[{60+2*i}:{61+2*i}]")
    def stamp_out(n):
        uid[0] += 1
        if cfg.probe:
            i = int(cfg.probe[1:]) if cfg.probe[0] == role[0] else 0
            a("s_waitcnt vmcnt(0)")
            stamp(n)
            a(f"""
            s_waitcnt lgkmcnt(0)
            s_sub_u32 s40, s{60+2*i}, s60
            s_lshl_b32 s40, s40, 2
            s_add_u32 s40, s40, 2000
            L_probe_{uid[0]}:
            s_sleep 1
            s_memrealtime s[42:43]
            s_waitcnt lgkmcnt(0)
            s_sub_u32 s41, s42, s60
            s_cmp_lt_u32 s41, s40
            s_cbranch_scc1 L_probe_{uid[0]}
            """)
            return
        if not cfg.stamps: return
        a("s_waitcnt vmcnt(0)")
        stamp(n)
        a("s_waitcnt lgkmcnt(0)")
        for i in range(16):
            a(f"v_mov_b32 v{40+i}, s{60+2*i}" if (role[0], i) in extra else f"v_mov_b32 v{40+i}, s60")
        a(f"""
        s_lshl_b32 s40, s2, 2
        s_add_u32 s40, s40, s26
        s_lshl_b32 s40, s40, 6
        s_add_u32 s40, s40, {STAMP + (0 if role[0] == 'c' else 256*4*64)}
        v_mov_b32 v1, s40
        s_mov_b64 exec, 1
        global_store_dwordx4 v1, v[40:43], s[22:23]
        global_store_dwordx4 v1, v[44:47], s[22:23] offset:16
        global_store_dwordx4 v1, v[48:51], s[22:23] offset:32
        global_store_dwordx4 v1, v[52:55], s[22:23] offset:48
        """)
    def unp(dst, src): a(f"v_lshlrev_b32 v{dst}, 16, v{src}\nv_and_b32 v{dst+1}, 0xffff0000, v{src}")
    XCC = "s_and_b32 s28, s25, 1" if cfg.force_slow else "s_getreg_b32 s28, hwreg(HW_REG_XCC_ID, 0, 4)"
    def gather_addr(va, tmp):
        return f"""
        s_lshl_b32 s40, s24, 18
        s_lshl_b32 s41, s25, 6
        s_add_u32 s51, s40, s41
        s_lshl_b32 s41, s26, 16
        s_add_u32 s41, s41, s51
        v_and_b32 v{tmp}, 3, v0
        v_lshl_add_u32 v{tmp}, v{tmp}, 4, s41
        v_bfe_u32 v{va}, v0, 2, 4
        v_lshl_add_u32 v{va}, v{va}, 11, v{tmp}
        v_add_u32 v{va+1}, 0x8000, v{va}
        """
    K0, V0, W0 = 128, 140, 148
    KVP, DD = 16, 32
    ACC, BR, NB, AF = 36, 68, 12, 128
    YA = 120
    vm = Vm(a)
    if cfg.align:
        a(f"""
        s_memrealtime s[4:5]
        s_and_b32 s7, s2, 7
        s_mul_i32 s7, s7, {cfg.align-1}
        s_waitcnt lgkmcnt(0)
        s_add_u32 s6, s4, 0x1100
        s_and_b32 s6, s6, 0xfffff000
        s_add_u32 s6, s6, s7
        L_align:
        s_memrealtime s[4:5]
        s_waitcnt lgkmcnt(0)
        s_sub_u32 s4, s4, s6
        s_cmp_lt_i32 s4, 0
        s_cbranch_scc1 L_align
        s_branch L_start
        .p2align 12
        L_start:
        """)
    stamp(0)
    a(f"""
    s_load_dwordx16 s[4:19], s[0:1], 0
    s_load_dwordx2 s[22:23], s[0:1], 104
    s_load_dwordx2 s[20:21], s[0:1], 88
    s_cmp_ge_u32 s2, 256
    s_cbranch_scc1 L_exit
    v_lshrrev_b32 v2, 6, v0
    v_and_b32 v1, 15, v0
    v_readfirstlane_b32 s26, v2
    s_and_b32 s24, s2, 7
    {f"s_xor_b32 s24, s24, {cfg.gxor}" if cfg.gxor else ""}
    {"s_lshl_b32 s24, s24, 2" if cfg.gperm else ""}
    {"s_lshr_b32 s24, 0x65421073, s24" if cfg.gperm else ""}
    {"s_and_b32 s24, s24, 7" if cfg.gperm else ""}
    s_lshr_b32 s25, s2, 3
    s_cmp_ge_u32 s26, 4
    s_cbranch_scc1 L_fnet
    s_getpc_b64 s[30:31]
    L_pc:
    v_lshlrev_b32 v3, 7, v0
    v_min_u32 v3, L_code_end-L_pc-4, v3
    """)
    if cfg.cpf == 1: vm.issue("global_load_dword v255, v3, s[30:31]")
    if cfg.cpf == 2:
        a("""
        s_lshl2_add_u32 s40, s25, s26
        s_lshl_b32 s40, s40, 7
        s_min_u32 s40, s40, L_code_end-L_pc-4
        v_mov_b32 v3, s40
        """)
        vm.issue("global_load_dword v255, v3, s[30:31]")
    if cfg.cpf == 3:
        a("""
        s_and_b32 s40, s25, 3
        s_lshl2_add_u32 s40, s40, s26
        s_lshl_b32 s40, s40, 10
        v_and_b32 v3, 7, v0
        v_lshl_add_u32 v3, v3, 7, s40
        v_min_u32 v3, L_code_end-L_pc-4, v3
        """)
        vm.issue("global_load_dword v255, v3, s[30:31]")
    a(f"""
    s_lshr_b32 s43, s25, 1
    {"s_add_u32 s41, s24, s43" if cfg.xrot else "s_mov_b32 s41, s24"}
    s_and_b32 s41, s41, 7
    s_lshl3_add_u32 s41, s43, s41
    s_and_b32 s42, s25, 1
    s_lshl1_add_u32 s42, s41, s42
    s_lshl_b32 s42, s42, 6
    s_lshl_b32 s41, s24, 7
    v_bfe_u32 v9, v0, 2, 4
    v_lshl_add_u32 v9, v2, 5, v9
    v_and_b32 v15, 3, v0
    v_lshl_add_u32 v10, v15, 4, s42
    v_lshl_add_u32 v9, v9, 14, v10
    v_add_u32 v10, 0x40000, v9
    s_lshl_b32 s43, s26, 11
    s_add_u32 m0, s43, {XT}
    v_lshrrev_b32 v3, 5, v0
    v_and_b32 v4, 31, v0
    s_lshl_b32 s40, s25, 16
    s_add_u32 s40, s40, 4096
    v_lshl_add_u32 v7, v4, 2, s41
    v_lshl_add_u32 v5, v3, 13, s40
    v_add_u32 v5, v5, v7
    v_add_u32 v6, 0xffffe400, v5
    v_lshlrev_b32 v8, 2, v7
    s_lshl_b32 s40, s24, 5
    s_add_u32 s40, s40, s25
    s_lshl1_add_u32 s40, s40, 1
    s_lshl_b32 s40, s40, 12
    v_lshl_add_u32 v11, v0, 4, s40
    v_lshl_add_u32 v12, v0, 5, s40
    s_mov_b32 s59, {SENT}
    v_mov_b32 v124, s59
    v_mov_b32 v125, s59
    v_mov_b32 v126, s59
    v_mov_b32 v127, s59
    s_mov_b32 s34, 0x200000
    s_mov_b32 s35, 0x20000
    s_waitcnt lgkmcnt(0)
    """)
    PL = "global_load_dword v254, v12, s[22:23] offset:-4096 nt"
    if cfg.ppos == 3: vm.issue(PL)
    vm.issue("global_load_lds_dwordx4 v9, s[16:17]")
    a(f"s_add_u32 m0, s43, {XT+1024}\ns_mov_b64 s[32:33], s[6:7]")
    if cfg.ppos == 4: vm.issue(PL)
    vm.issue("global_load_lds_dwordx4 v10, s[16:17]")
    vm.issue(f"global_store_dwordx4 v11, v[124:127], s[22:23] offset:-4096 {cfg.sflag}")
    tS = vm.issue(f"global_store_dwordx4 v11, v[124:127], s[22:23] {cfg.sflag}")
    a(f"""
    s_add_u32 s44, s22, {FE}
    s_addc_u32 s45, s23, 0
    s_load_dword s27, s[44:45], 0
    s_barrier
    """)
    tW = vm.issue(f"global_load_dwordx4 {vr(W0,4)}, v8, s[10:11]")
    stamp(1)
    tK = []
    for j in range(3): tK.append(vm.issue(f"buffer_load_dword v{K0+j}, v6, s[32:35], 0 offen offset:{1024*j}"))
    for j in range(8): tK.append(vm.issue(f"global_load_dword v{K0+3+j}, v5, s[6:7] offset:{1024*j-4096}"))
    tV = [vm.issue(f"global_load_dword v{V0+j}, v5, s[8:9] offset:{1024*j-4096}") for j in range(8)]
    vm.issue(f"global_load_dword v{DD}, v7, s[14:15]")
    if cfg.conv_prio: a(f"s_setprio {cfg.conv_prio}")
    a(f"""
    s_mov_b32 s58, 0
    {XCC}
    s_lshl_b32 s42, s24, 12
    s_add_u32 s42, s42, {CF}
    s_add_u32 s46, s22, s42
    s_addc_u32 s47, s23, 0
    v_mov_b64 v[36:37], 0
    v_mov_b64 v[38:39], 0
    v_and_b32 v9, 1, v3
    v_mul_u32_u24 v9, {XIS}, v9
    v_lshl_add_u32 v9, v4, 4, v9
    v_add_u32 v9, {XI}, v9
    v_lshrrev_b32 v10, 1, v1
    v_mul_u32_u24 v10, {HCS}, v10
    v_and_b32 v11, 1, v0
    v_lshl_add_u32 v10, v11, 4, v10
    v_cmp_gt_u32 vcc, 64, v0
    v_cndmask_b32 v9, v10, v9, vcc
    v_and_b32 v10, 7, v0
    v_lshlrev_b32 v10, 4, v10
    v_add_u32 v10, {FL}, v10
    v_cmp_gt_u32 vcc, 128, v0
    v_cndmask_b32 v9, v10, v9, vcc
    ds_write_b128 v9, v[36:39]
    s_lshl_b32 s42, s25, 2
    v_mov_b32 v10, s42
    s_waitcnt lgkmcnt(0)
    {TAG}
    s_xor_b32 s29, s27, s28
    v_mov_b32 v33, s29
    s_mov_b64 exec, 1
    s_waitcnt {vm.cnt(tS)}
    s_barrier
    """)
    vm.issue(f"global_store_dword v10, v33, s[46:47] offset:{CF_KV}")
    a("s_mov_b64 exec, -1")
    stamp(2)
    a(gather_addr(14, 13))
    a(f"""
    s_lshr_b32 s48, s26, 1
    s_and_b32 s49, s26, 1
    s_lshl2_add_u32 s41, s25, s26
    s_lshl_b32 s41, s41, 11
    s_add_u32 s41, s41, s40
    v_lshlrev_b32 v25, 10, v3
    v_lshl_add_u32 v25, v4, 2, v25
    v_lshlrev_b32 v11, 2, v4
    v_bfe_u32 v3, v0, 4, 2
    v_lshl_add_u32 v9, v1, 6, s41
    v_bfe_u32 v13, v0, 4, 1
    v_lshl_add_u32 v9, v13, 5, v9
    v_bfe_u32 v12, v0, 5, 1
    v_lshl_add_u32 v9, v12, 4, v9
    v_and_b32 v2, 63, v0
    v_and_b32 v13, 3, v0
    v_sub_u32 v12, 3, v13
    v_mul_u32_u24 v12, {HCS}, v12
    v_or_b32 v13, 3, v1
    v_lshl_add_u32 v12, v13, 1, v12
    v_lshl_add_u32 v12, v3, 4, v12
    s_mul_i32 s42, s48, {HCH}
    s_lshl_b32 s41, s49, 8
    s_add_u32 s42, s42, s41
    s_add_u32 s42, s42, {HC+2}
    v_add_u32 v12, s42, v12
    s_mul_i32 s42, s48, {XIS}
    s_sub_u32 s42, s42, s41
    s_add_u32 s42, s42, {XI+512-176}
    v_lshlrev_b32 v13, 1, v1
    v_sub_u32 v13, v13, v3
    v_lshl_add_u32 v13, v13, 4, s42
    v_bfe_u32 v24, v0, 1, 1
    v_mul_u32_u24 v24, {XIS}, v24
    v_bfe_u32 v26, v0, 2, 4
    v_lshl_add_u32 v24, v26, 5, v24
    v_and_b32 v26, 1, v0
    v_lshl_add_u32 v24, v26, 4, v24
    s_lshl_b32 s41, s26, 10
    v_add_u32 v24, s41, v24
    s_mov_b32 s52, 0
    s_mov_b32 s53, 0
    s_lshl_b32 s41, s26, 12
    s_add_u32 s41, s41, {PX}
    v_lshl_add_u32 v8, v2, 4, s41
    s_xor_b32 s41, s26, 1
    s_lshl_b32 s41, s41, 12
    s_add_u32 s41, s41, {PX}
    v_lshl_add_u32 v6, v2, 4, s41
    s_lshl2_add_u32 s41, s26, {FL}
    v_mov_b32 v10, s41
    v_and_b32 v4, 7, v0
    v_lshlrev_b32 v4, 2, v4
    v_add_u32 v4, {FL}, v4
    v_mov_b32 v26, {FL+32}
    v_mov_b32 v35, 1
    """)
    WP, KF, VF, AC = 152, 160, 184, 200
    vm.wait(tW)
    for j in range(4):
        for ch in range(2):
            src = W0 + 2*ch + (j >> 1)
            if j & 1: a(f"v_and_b32 v{WP+2*j+ch}, 0xffff0000, v{src}")
            else:     a(f"v_lshlrev_b32 v{WP+2*j+ch}, 16, v{src}")
    def rows(ns):
        for j in (3, 2, 1, 0):
            for n in ns:
                k = vr(KF + 2*(n + 3 - j), 2); w = vr(WP + 2*j, 2); d = vr(AC + 2*n, 2)
                if j == 3: a(f"v_pk_mul_f32 {d}, {k}, {w}")
                else:      a(f"v_pk_fma_f32 {d}, {k}, {w}, {d}")
    vm.wait(tK[6])
    for n in range(7): unp(KF+2*n, K0+n)
    rows(range(4))
    vm.wait(tK[10])
    stamp(3)
    for n in range(7, 11): unp(KF+2*n, K0+n)
    rows(range(4, 8))
    vm.wait(tV[3])
    for n in range(4): unp(VF+2*n, V0+n)
    for n in range(4): a(f"v_pk_mul_f32 {vr(AC+2*n,2)}, {vr(AC+2*n,2)}, {vr(VF+2*n,2)}")
    for q in (2, 3):
        for ch in range(2):
            a(f"v_cvt_pk_bf16_f32 v{KVP+4*ch+q}, v{AC+2*(7-2*q)+ch}, v{AC+2*(6-2*q)+ch}")
    tP = vm.issue(f"global_load_dword v34, v11, s[46:47] offset:{CF_KV} sc1")
    for q in (2, 3): a(f"v_permlane16_swap_b32 v{KVP+q}, v{KVP+4+q}")
    vm.wait(tV[7])
    for n in range(4, 8): unp(VF+2*n, V0+n)
    for n in range(4, 8): a(f"v_pk_mul_f32 {vr(AC+2*n,2)}, {vr(AC+2*n,2)}, {vr(VF+2*n,2)}")
    for q in (0, 1):
        for ch in range(2):
            a(f"v_cvt_pk_bf16_f32 v{KVP+4*ch+q}, v{AC+2*(7-2*q)+ch}, v{AC+2*(6-2*q)+ch}")
    for q in (0, 1): a(f"v_permlane16_swap_b32 v{KVP+q}, v{KVP+4+q}")
    for n in range(2):
        vm.issue(f"global_store_dwordx4 v9, {vr(KVP+4*n,4)}, s[22:23] offset:{1024*n}")
    stamp(4)
    a(f"""
    s_cmp_lg_u32 s49, 0
    s_cbranch_scc1 L_convB
    """)
    pollcnt = vm.cnt(tP)
    slow_stubs = []
    def conv_variant(own, foreign, tg):
        XL = 100
        a(f"""
        s_waitcnt {pollcnt}
        v_cmp_ne_u32 vcc, s29, v34
        s_cbranch_vccnz L_kvretry
        L_kvok{tg}:
        global_load_dwordx4 {vr(XL,4)}, v14, s[22:23] sc1
        global_load_dwordx4 {vr(XL+4,4)}, v15, s[22:23] sc1
        """)
        stamp(5)
        a(f"""
        s_lshl_b32 s42, s48, 5
        s_add_u32 s41, s51, s42
        v_lshl_add_u32 v27, v1, 11, s41
        v_lshl_add_u32 v27, v3, 3, v27
        v_add_u32 v{YA}, {own[0] << 15}, v27
        v_add_u32 v{YA+1}, {own[1] << 15}, v27
        v_add_u32 v{YA+2}, {own[2] << 15}, v27
        v_add_u32 v{YA+3}, {own[3] << 15}, v27
        s_mul_i32 s54, s53, {CF_SLOW}
        s_lshr_b32 s40, s25, 3
        s_lshl_b32 s40, s40, 7
        s_add_u32 s40, s40, s54
        v_add_u32 v11, s40, v11
        s_barrier
        """)
        seq = []
        for ph, tiles in ((0, foreign), (1, own)):
            for v in range(max(tiles) + 1):
                for rr in range(4):
                    seq.append((ph, v, rr, [j for j in tiles if j >= v]))
        aorder = []
        for (ph, v, rr, tiles) in seq:
            for j in tiles:
                if (j - v, rr) not in aorder: aorder.append((j - v, rr))
        areads = []
        for (u, rr) in aorder:
            f = AF + 4*(4*u + rr)
            areads.append(((u, rr, 0), f"ds_read_b64 {vr(f,2)}, v12 offset:{512*u+64*rr}"))
            areads.append(((u, rr, 1), f"ds_read_b64 {vr(f+2,2)}, v12 offset:{512*u+64*rr+8}"))
        lg = Lgkm(a)
        atok = {}
        def ard(n):
            for _ in range(n):
                if areads:
                    k, t = areads.pop(0)
                    atok[k] = lg.issue(t)
        ard(cfg.apre)
        a(f"""
        L_xpoll{tg}:
        s_waitcnt vmcnt(0)
        """)
        for i in range(8): a(f"v_cmpx_ne_u32 vcc, s59, v{XL+i}")
        a(f"""
        s_not_b64 exec, vcc
        s_cbranch_scc0 L_xok{tg}
        global_load_dwordx4 {vr(XL,4)}, v14, s[22:23] sc1
        global_load_dwordx4 {vr(XL+4,4)}, v15, s[22:23] sc1
        s_mov_b64 exec, -1
        {BOUND}
        s_branch L_xpoll{tg}
        L_xok{tg}:
        s_mov_b64 exec, -1
        """)
        stamp(6)
        lg.issue(f"ds_write_b128 v24, {vr(XL,4)} offset:{XI+512}")
        t = lg.issue(f"ds_write_b128 v24, {vr(XL+4,4)} offset:{XI+512+512}")
        a(f"v_add_u32 v25, {XT}, v25")
        lg.wait(t)
        a("s_barrier")
        stamp(7)
        vm = Vm(a)
        st = {}
        def accreg(ph, j):
            tiles = own if ph else foreign
            return ACC + 16*ph + 4*tiles.index(j)
        mf = []
        first, last, done = {}, {}, {}
        deferred = []
        for i, (ph, v, rr, tiles) in enumerate(seq):
            if ph == 1 and own == S1 and v == 6 and deferred:
                mf += deferred; deferred = []
            for j in tiles:
                if ph == 1 and own == S1 and j == 6 and v in (4, 5): deferred.append((i, ph, j, j - v, rr))
                else: mf.append((i, ph, j, j - v, rr))
        for n, (i, ph, j, u, rr) in enumerate(mf):
            first.setdefault(i, n); last[i] = n
            done[ph, j] = n
        afirst = {}
        for n, (i, ph, j, u, rr) in enumerate(mf): afirst.setdefault((u, rr), n)
        tok = {}
        jobs = []
        def bread(i):
            ph, v, rr, _ = seq[i]
            def f(): tok[i] = lg.issue(f"ds_read_b128 {vr(BR+4*(i % NB),4)}, v13 offset:{512*v+64*(3-rr)}")
            return f
        npre = sum(1 for i in range(len(seq)) if first[i] <= cfg.lead)
        for i in range(npre): bread(i)()
        for i in range(npre, len(seq)):
            jobs.append([first[i] - cfg.lead, last[i - NB] if i >= NB else 0, bread(i)])
        for k, t in areads:
            def f(k=k, t=t): atok[k] = lg.issue(t)
            jobs.append([afirst[k[:2]] - cfg.lead, 0, f])
        for j in foreign:
            def f(j=j): lg.issue(f"ds_write_b128 v8, {vr(accreg(0,j),4)} offset:{1024*foreign.index(j)}")
            jobs.append([done[0, j] + 6, done[0, j] + 5, f])
        jobs.append([done[0, max(foreign)] + 7.5, done[0, max(foreign)] + 7, lambda: lg.issue("ds_write_b32 v10, v35")])
        pxr = ["ds_read_b32 v34, v4"] + [f"ds_read_b128 {vr(ACC+4*t,4)}, v6 offset:{1024*t}" for t in range(4)]
        for n, x in enumerate(pxr):
            def f(x=x): st["px"] = lg.issue(x)
            jobs.append([cfg.px_at + n, cfg.px_at + n, f])
        if cfg.gate: jobs.append([cfg.gate, cfg.gate, lambda: lg.issue("ds_write_b32 v10, v35 offset:64")])
        Q0 = 248
        qreads = ["ds_read_b32 v28, v26"] + [f"ds_read2_b32 {vr(Q0+2*i,2)}, v25 offset0:{64*i} offset1:{64*i+32}" for i in range(4)]
        for n, x in enumerate(qreads):
            jobs.append([200 + n, 143, lambda x=x: lg.issue(x)])
        vjobs = []
        def chk_px():
            lg.wait(st["px"])
            a(f"""
            v_cmp_ne_u32 vcc, 1, v34
            s_cbranch_vccnz L_pxretry{tg}
            L_pxok{tg}:
            """)
            slow_stubs.append(f"L_pxretry{tg}:\n" + BOUND + "\n".join(pxr) + f"""
            s_waitcnt lgkmcnt(0)
            v_cmp_ne_u32 vcc, 1, v34
            s_cbranch_vccnz L_pxretry{tg}
            s_branch L_pxok{tg}
            """)
        vjobs.append([cfg.px_at + 4 + cfg.lead, chk_px])
        ystores = []
        for t, j in enumerate(own):
            r = accreg(1, j); p = ACC + 4*t
            e = done[1, j] + 5
            vjobs.append([e, lambda p=p, r=r: a(f"v_add_f32 v{p}, v{p}, v{r}\nv_add_f32 v{p+1}, v{p+1}, v{r+1}")])
            vjobs.append([e, lambda p=p, r=r: a(f"v_add_f32 v{p+2}, v{p+2}, v{r+2}\nv_add_f32 v{p+3}, v{p+3}, v{r+3}")])
            vjobs.append([e, lambda p=p: a(f"v_cvt_pk_bf16_f32 v{p}, v{p}, v{p+1}\nv_cvt_pk_bf16_f32 v{p+1}, v{p+2}, v{p+3}")])
            ystores.append(f"global_store_dwordx2 v{YA+t}, {vr(p,2)}, s[22:23]")
            vjobs.append([e, lambda x=ystores[-1]: vm.issue(f"{x} {cfg.xflag}")])
            if t == 0:
                def clrpoll(): st["poll"] = vm.issue(f"global_load_dword v14, v11, s[46:47] offset:{CF_Y} sc1")
                vjobs.append([cfg.poll_at, clrpoll])
        issued_at = {}
        def need(n):
            i, ph, j, u, rr = mf[n]
            return max(tok[i], atok[(u, rr, 1)])
        def slack(n):
            dl = sorted(x[0] for x in jobs)
            return all(d > n + k for k, d in enumerate(dl))
        started = set()
        late = 0
        lg.wait(need(0))
        for n, (i, ph, j, u, rr) in enumerate(mf):
            d = vr(accreg(ph, j), 4)
            c = d if (ph, j) in started else "0"
            started.add((ph, j))
            a(f"v_mfma_f32_16x16x32_bf16 {d}, {vr(AF+4*(4*u+rr),4)}, {vr(BR+4*(i % NB),4)}, {c}")
            if n + 1 in (36, 72, 108): stamp({36: 13, 72: 14, 108: 15}[n + 1])
            issued_at[n] = lg.n
            nxt = mf[n + 1] if n + 1 < len(mf) else None
            ready = sorted([x for x in jobs if x[1] <= n], key=lambda x: x[0])
            mustwait = nxt is not None and nxt[0] in tok and (nxt[3], nxt[4], 1) in atok and need(n + 1) > lg.done
            if vjobs and vjobs[0][0] <= n and not mustwait and (slack(n) or not ready):
                vjobs.pop(0)[1]()
            elif ready:
                x = ready[0]
                if x[0] < n: late += 1
                jobs.remove(x); x[2]()
            elif vjobs and n < vjobs[0][0] <= n + 5 and not mustwait: a("s_nop 0")
            if nxt is not None:
                while nxt[0] not in tok or (nxt[3], nxt[4], 1) not in atok:
                    x = sorted([x for x in jobs if x[1] <= n], key=lambda x: x[0])[0]
                    jobs.remove(x); x[2](); late += 1
                if need(n + 1) > lg.done:
                    lg.wait(max(need(n + 1), issued_at.get(n - cfg.lead + 2, 0)))
        for x in sorted(jobs, key=lambda x: x[0]): x[2]()
        rest_v = len(vjobs)
        for x in vjobs: x[1]()
        print(f"variant {tg}: late LDS jobs {late}, vector jobs after the stream {rest_v}")
        a(f"""
        s_cmp_lg_u32 s53, 0
        s_cbranch_scc1 L_yslow{tg}
        L_yback{tg}:
        """)
        slow_stubs.append(f"L_yslow{tg}:\n" + "\n".join(f"v_add_u32 v{YA+t}, {KVS}, v{YA+t}" for t in range(4)) + "\n"
                          + "\n".join(x + " sc1" for x in ystores) + f"\ns_waitcnt vmcnt(0)\ns_branch L_yback{tg}")
        stamp(8)
        QF, QT = 128, 144
        YL, YF = 72, 80
        vm.wait(st["poll"])
        a(f"""
        v_cmp_ne_u32 vcc, s29, v14
        s_cbranch_vccnz L_clrretry{tg}
        L_clrok{tg}:
        """)
        slow_stubs.append(f"""
        L_clrretry{tg}:
        {BOUND}
        global_load_dword v14, v11, s[46:47] offset:{CF_Y} sc1
        s_waitcnt vmcnt(0)
        v_cmp_ne_u32 vcc, s29, v14
        s_cbranch_vccnz L_clrretry{tg}
        s_branch L_clrok{tg}
        """)
        stamp(9)
        YLD = f"""
        global_load_dwordx4 {vr(YL,4)}, v9, s[22:23] sc1
        global_load_dwordx4 {vr(YL+4,4)}, v9, s[22:23] offset:1024 sc1
        """
        for q in range(4): a(f"v_permlane16_swap_b32 v{KVP+q}, v{KVP+4+q}")
        unp(36, DD)
        for ch in range(2):
            for q in range(4):
                a(f"v_lshlrev_b32 v{QT+2*(7-2*q)+ch}, 16, v{KVP+4*ch+q}\nv_and_b32 v{QT+2*(6-2*q)+ch}, 0xffff0000, v{KVP+4*ch+q}")
        a(YLD)
        a(f"""
        v_lshlrev_b32 v12, 1, v5
        v_sub_u32 v12, v12, v7
        v_add_u32 v12, 0xfffff000, v12
        v_add_u32 v13, 8192, v12
        s_waitcnt lgkmcnt(0)
        v_cmp_ne_u32 vcc, 1, v28
        s_cbranch_vccnz L_qretry{tg}
        L_qok{tg}:
        """)
        slow_stubs.append(f"L_qretry{tg}:\n" + BOUND + "\n".join(qreads) + f"""
        s_waitcnt lgkmcnt(0)
        v_cmp_ne_u32 vcc, 1, v28
        s_cbranch_vccnz L_qretry{tg}
        s_branch L_qok{tg}
        """)
        for n in range(8): unp(QF+2*n, Q0+n)
        for n in range(8): a(f"v_pk_mul_f32 {vr(QT+2*n,2)}, {vr(QT+2*n,2)}, v[36:37]")
        for n in range(8): a(f"v_pk_mul_f32 {vr(QT+2*n,2)}, {vr(QT+2*n,2)}, {vr(QF+2*n,2)}")
        stamp(10)
        a(f"""
        L_ypoll{tg}:
        s_waitcnt vmcnt(0)
        """)
        for i in range(8): a(f"v_cmpx_ne_u32 vcc, s59, v{YL+i}")
        a(f"""
        s_not_b64 exec, vcc
        s_cbranch_scc0 L_yok{tg}
        {YLD}
        s_mov_b64 exec, -1
        {BOUND}
        s_branch L_ypoll{tg}
        L_yok{tg}:
        s_mov_b64 exec, -1
        s_nop 0
        """)
        stamp(11)
        for q in range(4): a(f"v_permlane16_swap_b32 v{YL+q}, v{YL+4+q}")
        for q in range(4):
            a(f"v_lshlrev_b32 v{YF+4*q}, 16, v{YL+q}\nv_and_b32 v{YF+4*q+2}, 0xffff0000, v{YL+q}")
            a(f"v_lshlrev_b32 v{YF+4*q+1}, 16, v{YL+4+q}\nv_and_b32 v{YF+4*q+3}, 0xffff0000, v{YL+4+q}")
            for n in (2*q, 2*q+1):
                a(f"v_pk_fma_f32 {vr(YF+2*n,2)}, {vr(YF+2*n,2)}, {vr(QF+2*n,2)}, {vr(QT+2*n,2)}")
            for n in (2*q, 2*q+1):
                a(f"v_cvt_pk_bf16_f32 v{YF+2*n}, v{YF+2*n}, v{YF+2*n+1}")
            for n in (2*q, 2*q+1):
                a(f"global_store_dword {'v12' if n < 4 else 'v13'}, v{YF+2*n}, s[20:21] offset:{2048*(n&3)-4096} {cfg.out_flag}")
        stamp_out(12)
        a("s_endpgm")
    conv_variant(S0, S1, "A")
    a("L_convB:")
    conv_variant(S1, S0, "B")
    C1, BD, A1 = 16, 48, 80
    HD, HE, T = 128, 136, 140
    C0, CS1, TWC, TWS, CS2 = 192, 200, 208, 216, 224
    rFS, rLZ, rFV, rCL, rQ, rSE, rLF, rMD, rZA, rGZ, rGV, rZW, rZR, rZS = 108, 109, 110, 112, 114, 116, 120, 121, 122, 123, 124, 125, 126, 127
    rO, rZF, rONE, rLP, rP, rH, rE = 240, 242, 243, 244, 246, 247, 248
    HI, LO = ('v5', 'v6') if cfg.z32 else ('v9', 'v1')
    a("L_fnet:\ns_barrier")
    role[0] = 'f'
    vm = Vm(a)
    stamp(1)
    if cfg.fnet_prio: a(f"s_setprio {cfg.fnet_prio}")
    a(f"""
    v_and_b32 v0, 255, v0
    s_and_b32 s26, s26, 3
    v_and_b32 v2, 3, v2
    s_mov_b32 s58, 0
    s_lshr_b32 s57, s25, 1
    {"s_add_u32 s40, s24, s57" if cfg.xrot else "s_mov_b32 s40, s24"}
    s_and_b32 s40, s40, 7
    s_and_b32 s56, s25, 1
    s_lshl1_add_u32 s56, s40, s56
    s_waitcnt lgkmcnt(0)
    s_add_u32 s44, s22, {FE}
    s_addc_u32 s45, s23, 0
    s_load_dword s27, s[44:45], 0
    v_bfe_u32 v3, v0, 1, 4
    v_lshl_add_u32 v3, v2, 4, v3
    v_and_b32 v4, 1, v0
    v_bfe_u32 v5, v0, 5, 1
    v_mul_u32_u24 v6, s57, v3
    v_lshl_add_u32 v6, v4, 9, v6
    v_lshlrev_b32 v7, 4, v3
    v_and_b32 v8, 0xdf, v0
    v_cmp_eq_u32 vcc, 1, v8
    v_mov_b32 v9, 0x400
    v_cndmask_b32 v6, v6, 0, vcc
    v_cndmask_b32 v7, v7, v9, vcc
    v_lshlrev_b32 v9, 3, v5
    v_mad_u32_u24 v6, v9, v7, v6
    v_cvt_f32_u32 v6, v6
    v_cvt_f32_u32 v7, v7
    v_mul_f32 v10, {f32(1/2048)}, v6
    v_mul_f32 v7, {f32(1/2048)}, v7
    v_add_f32 v11, v10, v7
    v_add_f32 v12, v7, v7
    v_mov_b32 v13, v12
    v_mul_f32 v14, {f32(10.0)}, v7
    v_mov_b32 v15, v14
    v_and_b32 v8, 2, v0
    v_mul_u32_u24 v8, 0x4000, v8
    v_lshl_or_b32 v8, v8, 16, v8
    """)
    for ks in range(4):
        for i2 in range(4):
            a(f"v_cos_f32 v100, v10\nv_cos_f32 v101, v11")
            if not (ks == 3 and i2 == 3):
                a(f"v_pk_add_f32 v[10:11], v[10:11], {'v[12:13]' if i2 < 3 else 'v[14:15]'}")
            a(f"v_cvt_pk_bf16_f32 v{C1+4*ks+i2}, v100, v101")
    a(f"""
    v_and_b32 v6, 31, v0
    v_bfe_u32 v9, v0, 4, 2
    v_bfe_u32 v7, v0, 2, 2
    v_lshl_add_u32 v3, v5, 3, v7
    v_lshlrev_b32 v3, 6, v3
    v_and_b32 v10, 1, v9
    v_lshl_add_u32 v3, v10, 5, v3
    v_and_b32 v10, 3, v0
    v_lshl_add_u32 v3, v10, 3, v3
    v_add_u32 v3, {XT}, v3
    v_lshlrev_b32 v{rH}, 4, v0
    v_add_u32 v{rE}, -8, v{rH}
    s_lshl_b32 s34, s25, 13
    s_lshl_b32 s35, s24, 18
    s_add_u32 s34, s34, s35
    s_add_u32 s35, s34, 4096
    s_mov_b64 s[36:37], s[12:13]
    s_mov_b32 s38, 0x200000
    s_mov_b32 s39, 0x20000
    v_lshrrev_b32 v{rP}, 2, v0
    v_lshl_add_u32 v{rP}, v{rP}, 7, s34
    s_lshl_b32 s42, s26, 19
    s_lshl_b32 s43, s56, 11
    s_add_u32 s42, s42, s43
    """)
    a(f"""
    s_lshl_b32 s43, s57, 7
    s_add_u32 s42, s42, s43
    s_add_u32 s42, s42, {Z1W}
    v_lshl_add_u32 v{rZS}, v6, 2, s42
    """ if cfg.z32 else f"""
    s_and_b32 s43, s57, 3
    s_lshl_b32 s43, s43, 8
    s_add_u32 s42, s42, s43
    s_lshr_b32 s43, s57, 2
    s_lshl_b32 s43, s43, 6
    s_add_u32 s42, s42, s43
    s_add_u32 s42, s42, {Z1W}
    v_lshl_add_u32 v{rZS}, v1, 2, s42
    v_and_b32 v10, 1, v9
    v_lshl_add_u32 v{rZS}, v10, 10, v{rZS}
    """)
    a(f"""
    v_lshl_add_u32 v{rZS}, v5, 16, v{rZS}
    s_lshr_b32 s48, s25, 2
    s_lshl3_add_u32 s48, s24, s48
    s_and_b32 s49, s25, 3
    """)
    def addrs():
        a(gather_addr(rCL, 13))
        a(f"""
        s_lshl_b32 s40, s24, 12
        s_add_u32 s40, s40, {CF}
        s_add_u32 s46, s22, s40
        s_addc_u32 s47, s23, 0
        s_lshl_b32 s42, s26, 7
        s_lshl2_add_u32 s42, s25, s42
        v_mov_b32 v{rFS}, s42
        v_lshlrev_b32 v{rLZ}, 3, v0
        v_and_b32 v13, 7, v0
        s_lshl3_add_u32 s42, s25, s24
        s_lshl_b32 s42, s42, {cfg.zfs}
        s_add_u32 s42, s42, {ZF}
        v_lshl_add_u32 v{rGZ}, v13, {8+cfg.zfs}, s42
        s_lshl_b32 s42, s24, 5
        s_add_u32 s42, s42, s25
        {"" if cfg.xrot else "s_lshl2_add_u32 s42, s42, s26"}
        s_lshl_b32 s42, s42, {cfg.zfs+(3 if cfg.xrot else 1)}
        s_add_u32 s42, s42, {ZF}
        s_add_u32 s54, s22, s42
        s_addc_u32 s55, s23, 0
        s_lshl_b32 s42, s25, 16
        s_lshl_b32 s43, s24, 7
        s_add_u32 s42, s42, s43
        v_lshl_add_u32 v{rQ}, v13, 4, s42
        {f"v_and_b32 v13, 3, v0" if not cfg.gate else ""}
        v_lshlrev_b32 v13, 2, v13
        v_add_u32 v{rZF}, {FL+48}, v13
        v_bfe_u32 v13, v0, 3, 3
        v_lshl_add_u32 v{rQ}, v13, 10, v{rQ}
        v_mov_b32 v{rSE}, {SENT}
        v_mov_b32 v{rSE+1}, v{rSE}
        v_mov_b64 v[{rSE+2}:{rSE+3}], v[{rSE}:{rSE+1}]
        s_lshl2_add_u32 s42, s26, {FL}
        v_mov_b32 v{rLF}, s42
        v_mov_b32 v{rONE}, 1
        v_mov_b32 v{rMD}, {FL+80}
        s_lshl2_add_u32 s42, s48, s26
        s_lshl_b32 s42, s42, 13
        s_add_u32 s42, s42, {Z1W+4096}
        {"v_lshl_add_u32 v13, v5, 7, v6" if cfg.z32 else "v_and_b32 v13, 63, v0"}
        v_lshl_add_u32 v{rZA}, v13, 2, s42
        s_lshl_b32 s42, s26, 9
        s_add_u32 s42, s42, {ZL}
        v_lshl_add_u32 v{rZW}, {LO}, 4, s42
        v_lshl_add_u32 v{rZW}, {HI}, 12, v{rZW}
        s_lshl_b32 s42, s26, 12
        s_add_u32 s42, s42, {ZL}
        v_lshl_add_u32 v{rZR}, v1, 4, s42
        v_lshl_add_u32 v{rZR}, v9, 9, v{rZR}
        s_lshl2_add_u32 s42, s49, s26
        s_lshl_b32 s42, s42, 7
        s_add_u32 s42, s42, s48
        s_sub_u32 s43, 2048, s42
        s_add_u32 s41, s42, 64
        s_cmp_eq_u32 s48, 0
        s_cselect_b32 s43, s41, s43
        s_lshl_b32 s42, s42, 11
        s_lshl_b32 s43, s43, 11
        v_lshlrev_b32 v13, 5, v1
        v_lshl_add_u32 v13, v9, 3, v13
        v_add_u32 v{rO}, s42, v13
        v_add_u32 v{rO+1}, s43, v13
        s_mov_b32 s33, 0
        """)
    if cfg.addr_at == 0: addrs()
    st = {}
    def hloads():
        vm.issue(f"buffer_load_dwordx4 {vr(HD,4)}, v{rH}, s[36:39], s34 offen")
        vm.issue(f"buffer_load_dwordx4 {vr(HD+4,4)}, v{rH}, s[36:39], s35 offen")
        a("s_mov_b64 exec, 1")
        vm.issue(f"buffer_load_dwordx2 {vr(HE,2)}, v{rE}, s[36:39], s34 offen")
        st["h"] = vm.issue(f"buffer_load_dwordx2 {vr(HE+2,2)}, v{rE}, s[36:39], s35 offen")
        a("s_mov_b64 exec, -1")
        if cfg.ppos == 1: vm.issue(f"global_load_dword v254, v{rP}, s[22:23] nt")
        stamp(11)
    if cfg.hpos == 3: hloads()
    a("s_waitcnt lgkmcnt(0)")
    stamp(2)
    a("s_barrier")
    lg = Lgkm(a)
    tk = []
    for ks in range(8):
        lg.issue(f"ds_read_b64_tr_b16 {vr(BD+4*ks,2)}, v3 offset:{1024*ks}")
        tk.append(lg.issue(f"ds_read_b64_tr_b16 {vr(BD+4*ks+2,2)}, v3 offset:{1024*ks+256}"))
    if cfg.hpos == 0: hloads()
    for ks in range(8):
        lg.wait(tk[ks])
        a(f"v_mfma_f32_32x32x16_bf16 {vr(A1,16)}, {vr(C1+4*ks,4)}, {vr(BD+4*ks,4)}, {vr(A1,16) if ks else 0}")
        if ks < 4:
            for i in range(4): a(f"v_xor_b32 v{C1+16+4*ks+i}, v{C1+4*ks+i}, v8")
    if cfg.hpos == 1: hloads()
    a(f"""
    {TAG}
    {XCC}
    s_xor_b32 s29, s27, s28
    s_mov_b32 s30, s27
    s_mov_b32 s31, s27
    v_mov_b32 v{rFV}, s29
    v_mov_b32 v{rGV}, s27
    s_lshl_b32 s42, s49, 2
    v_add_lshl_u32 v7, v7, s42, 1
    v_bfe_u32 v10, v0, 1, 1
    v_and_b32 v12, v10, v4
    """)
    for j in range(4):
        for b in range(2):
            a(f"v_cvt_pk_bf16_f32 v{BD+2*j+b}, v{A1+4*j+2*b}, v{A1+4*j+2*b+1}")
            tZ = vm.issue(f"global_store_dword v{rZS}, v{BD+2*j+b}, s[22:23] sc1")
            if not (j == 3 and b == 1):
                a(f"v_add_u32 v{rZS}, {0x8000 if b == 0 else 0x18000}, v{rZS}")
    if cfg.hpos == 2: hloads()
    if cfg.ppos == 2: vm.issue(f"global_load_dword v254, v{rP}, s[22:23] nt")
    stamp(3)
    a(f"""
    v_lshlrev_b32 v12, 4, v12
    v_mov_b32 v13, -1
    s_cmp_lg_u32 s48, 0
    s_cbranch_scc1 L_generic
    v_add_u32 v7, v7, v10
    v_lshlrev_b32 v12, 3, v10
    v_lshlrev_b32 v13, 4, v10
    v_mov_b32 v14, 0xffff
    v_lshlrev_b32 v13, v13, v14
    L_generic:
    v_lshl_add_u32 v12, v4, 3, v12
    v_lshlrev_b32 v10, 2, {HI}
    v_mad_u32_u24 v12, v10, v7, v12
    v_lshlrev_b32 v10, 2, v9
    v_cvt_f32_u32 v12, v12
    v_cvt_f32_u32 v7, v7
    v_mul_f32 v12, {f32(1/32)}, v12
    v_mul_f32 v7, {f32(1/32)}, v7
    """)
    for i in range(8 if cfg.z32 else 4):
        a(f"v_cos_f32 v100, v12\nv_sin_f32 v101, v12")
        if i % 4 < 3: a("v_add_f32 v12, v12, v7")
        elif i == 3 and cfg.z32: a(f"v_fmamk_f32 v12, v7, {f32(5.0)}, v12")
        a(f"v_cvt_pk_bf16_f32 v100, v100, v101\nv_and_b32 v{C0+i}, v100, v13")
    a(f"""
    v_mul_u32_u24 v14, 0x8000, v4
    v_lshl_or_b32 v14, v14, 16, v14
    v_mul_u32_u24 v10, v10, v1
    v_cvt_f32_u32 v10, v10
    v_cvt_f32_u32 v11, v1
    """)
    def cs1():
        a(f"v_mul_f32 v12, {f32(1/16)}, v10\nv_mul_f32 v13, {f32(1/16)}, v11")
        for i in range(4):
            a(f"v_cos_f32 v100, v12\nv_sin_f32 v101, v12")
            if i < 3: a("v_add_f32 v12, v12, v13")
            a(f"v_cvt_pk_bf16_f32 v{CS1+i}, v100, v101\nv_cvt_pk_bf16_f32 v{CS1+4+i}, -v101, v100")
    def tw():
        a(f"v_mul_f32 v12, {f32(1/512)}, v10\nv_mul_f32 v13, {f32(1/512)}, v11")
        for mt in range(2):
            for r in range(4):
                a(f"v_cos_f32 v{TWC+4*mt+r}, v12\nv_sin_f32 v{TWS+4*mt+r}, v12")
                if r < 3: a("v_add_f32 v12, v12, v13")
                elif mt == 0: a(f"v_fmamk_f32 v12, v13, {f32(13.0)}, v12")
    def cs2():
        a(f"v_mul_f32 v12, {f32(1/32)}, v10\nv_mul_f32 v13, {f32(1/32)}, v11")
        for r in range(4):
            a(f"v_cos_f32 v{100+r}, v12\nv_sin_f32 v{104+r}, v12")
            if r < 3: a("v_add_f32 v12, v12, v13")
        for i in range(4): a(f"v_cvt_pk_bf16_f32 v{CS2+i}, v{100+2*i}, v{101+2*i}")
        for i in range(4): a(f"v_xor_b32 v{CS2+4+i}, v{CS2+i}, v14")
        for i in range(8): a(f"v_xor_b32 v{CS2+8+i}, 0x80000000, v{CS2+i}")
    chunks = [cs1, tw, cs2]
    if cfg.addr_at == 1: addrs()
    for f in chunks[:cfg.npre]: f()
    def lzflag():
        a("s_mov_b64 exec, 1")
        vm.wait(tZ)
        vm.issue(f"global_store_dword v{rFS}, v{rFV}, s[46:47] offset:{CF_Z}")
        a("s_mov_b64 exec, -1")
        stamp(12)
    if cfg.lzpos == 3: lzflag()
    vm.wait(st["h"])
    stamp(4)
    if cfg.lzpos == 1: lzflag()
    for ch in range(2):
        d, e = HD + 4*ch, HE + 2*ch
        w = [e, e+1, d, d+1, d+2, d+3]
        t = T + 12*ch
        o = HC + 32 + ch*HCH
        a(f"ds_write_b128 v{rH}, {vr(d,4)} offset:{o}")
        for i in range(2): a(f"v_mov_b32_dpp v{e+i}, v{d+2+i} wave_shr:1 row_mask:0xf bank_mask:0xf")
        for i in range(4): a(f"v_alignbyte_b32 v{t+i}, v{w[i+2]}, v{w[i+1]}, 2")
        a(f"ds_write_b128 v{rH}, {vr(t,4)} offset:{o+HCS}")
        for i in range(4): a(f"v_mov_b32 v{t+4+i}, v{w[i+1]}")
        a(f"ds_write_b128 v{rH}, {vr(t+4,4)} offset:{o+2*HCS}")
        for i in range(4): a(f"v_alignbyte_b32 v{t+8+i}, v{w[i+1]}, v{w[i]}, 2")
        a(f"ds_write_b128 v{rH}, {vr(t+8,4)} offset:{o+3*HCS}")
    if cfg.lzpos == 2: lzflag()
    a("s_waitcnt lgkmcnt(0)")
    stamp(5)
    a("s_barrier")
    if cfg.lzpos == 0: lzflag()
    a(f"ds_read_b32 v{rMD}, v{rMD}")
    for f in chunks[cfg.npre:cfg.npre+cfg.nmid]: f()
    if cfg.aux_prio: a(f"s_setprio {cfg.aux_prio}")
    a(f"""
    s_waitcnt lgkmcnt(0)
    v_cmp_ne_u32 vcc, 0, v{rMD}
    s_cbranch_vccnz L_auxslow
    """)
    NZ = 8 if cfg.xrot else 2
    if cfg.zfs == 2: ZP_ = f"s_load_dwordx{NZ} s[8:{7+NZ}], s[54:55], 0 glc\n"
    else: ZP_ = "".join(f"s_load_dword s{8+i}, s[54:55], {i << cfg.zfs} glc\n" for i in range(NZ))
    ZC_ = "".join(f"s_cmp_eq_u64 s[{8+2*i}:{9+2*i}], s[30:31]\n" + ("s_cbranch_scc0 L_znot\n" if i < NZ//2 - 1 else "s_cbranch_scc1 L_zok\nL_znot:\n") for i in range(NZ//2))
    def side(fl, off, tg):
        q = ""
        for n in range(8):
            q += f"s_mov_b32 m0, {XT+1024*n}\n" + (f"v_add_u32 v{rQ}, 8192, v{rQ}\n" if n else "s_nop 0\n") + f"global_load_lds_dwordx4 v{rQ}, s[4:5]\n"
        LZ = f"global_load_dwordx2 {vr(rLP,2)}, v{rLZ}, s[46:47] offset:{off+CF_Z} sc1"
        CL = f"""
        global_store_dwordx4 v{rCL}, {vr(rSE,4)}, s[22:23] {fl}
        global_store_dwordx4 v{rCL+1}, {vr(rSE,4)}, s[22:23] {fl}
        """
        return f"""
        s_cmp_lg_u32 s26, 0
        s_cbranch_scc1 L_nolead{tg}
        {LZ}
        s_barrier
        {CL}
        s_waitcnt vmcnt(2)
        L_lzpoll{tg}:
        v_cmp_ne_u32 vcc, s29, v{rLP}
        v_cmp_ne_u32 s[40:41], s29, v{rLP+1}
        s_or_b64 vcc, vcc, s[40:41]
        s_cbranch_scc0 L_lzok{tg}
        {LZ}
        {BOUND}
        s_waitcnt vmcnt(0)
        s_branch L_lzpoll{tg}
        L_lzok{tg}:
        s_mov_b64 exec, 0xff
        global_store_dword v{rGZ}, v{rGV}, s[22:23] sc1
        s_mov_b64 exec, -1
        {"s_memrealtime s[72:73]" if cfg.stamps else ""}
        {q}
        s_waitcnt vmcnt(9)
        s_branch L_cleared{tg}
        L_nolead{tg}:
        s_barrier
        {CL}
        s_waitcnt vmcnt(0)
        L_cleared{tg}:
        {ZP_}
        ds_write_b32 v{rLF}, v{rONE} offset:16
        s_mov_b64 exec, 1
        global_store_dword v{rFS}, v{rFV}, s[46:47] offset:{off+CF_Y} {fl}
        s_mov_b64 exec, -1
        """
    stamp(6)
    a(side("", 0, "f"))
    a("L_auxjoin:")
    slow_stubs.append(f"""
    L_auxslow:
    s_mov_b32 s29, s27
    v_mov_b32 v{rFV}, s27
    v_add_u32 v{rCL}, {KVS}, v{rCL}
    v_add_u32 v{rCL+1}, {KVS}, v{rCL+1}
    s_mov_b64 exec, 1
    global_store_dword v{rFS}, v{rFV}, s[46:47] offset:{CF_SLOW+CF_Z} sc1
    s_mov_b64 exec, -1
    {side("sc1", CF_SLOW, "s")}
    s_branch L_auxjoin
    """)
    stamp(13)
    for f in chunks[cfg.npre+cfg.nmid:]: f()
    QF_ = f"ds_write_b32 v{rLF}, v{rONE} offset:32"
    a(f"""
    {"s_waitcnt vmcnt(0)" if cfg.nofnet2 else ""}
    {QF_ if cfg.nofnet2 else ""}
    {"s_endpgm" if cfg.nofnet2 else ""}
    L_zpoll:
    s_waitcnt lgkmcnt(0)
    {ZC_}
    {ZP_}
    {BOUND}
    s_add_u32 s33, s33, 1
    s_cmp_lt_u32 s33, 3
    s_cbranch_scc1 L_zpoll
    s_waitcnt vmcnt(0)
    {QF_}
    s_branch L_zpoll
    L_zok:
    """)
    stamp(7)
    ZD, A0, ZP = 48, 128, 80
    for dl in range(4):
        for hf in range(2):
            for i in range(4):
                a(f"global_load_dword v{ZD+8*dl+4*hf+i}, v{rZA}, s[22:23] offset:{2048*dl+1024*hf+(128 if cfg.z32 else 256)*i-4096} {cfg.zld}")
    a(f"s_waitcnt vmcnt(32)\n{QF_}")
    if cfg.aux_prio and cfg.aux_drop: a("s_setprio 0")
    stamp(14)
    def cv(dl, hf):
        for b in range(2):
            r = A0 + (16 if cfg.z32 else 8)*dl + 4*hf + 2*b
            a(f"v_cvt_pk_bf16_f32 v{ZP+4*(2*hf+b)+dl}, v{r}, v{r+1}")
    for dl in range(4):
        for hf in range(2):
            a(f"s_waitcnt vmcnt({32-8*dl-4*hf-4})")
            if cfg.z32:
                d = vr(A0+16*dl, 16)
                a(f"v_mfma_f32_32x32x16_bf16 {d}, {vr(C0+4*hf,4)}, {vr(ZD+8*dl+4*hf,4)}, {d if hf else 0}")
            else:
                a(f"v_mfma_f32_16x16x32_bf16 {vr(A0+8*dl+4*hf,4)}, {vr(C0,4)}, {vr(ZD+8*dl+4*hf,4)}, 0")
    stamp(8)
    for dl in range(4):
        for hf in range(2): cv(dl, hf)
    for hf in range(2):
        for b in range(2):
            a(f"ds_write_b128 v{rZW}, {vr(ZP+4*(2*hf+b),4)} offset:{2048*b+(8192 if cfg.z32 else 256)*hf}")
    ZA, G = 48, 128
    a(f"ds_write_b32 v{rLF}, v{rONE} offset:48\ns_or_b32 s42, s2, s26\nL_zl:\nds_read_b32 v8, v{rZF}")
    for row in range(2):
        for mt in range(2):
            a(f"ds_read_b128 {vr(ZA+8*row+4*mt,4)}, v{rZR} offset:{2048*row+256*mt}")
    a(f"""
    s_waitcnt lgkmcnt(4)
    v_cmp_ne_u32 vcc, 1, v8
    s_cbranch_vccz L_zlok
    {BOUND}
    s_waitcnt lgkmcnt(0)
    {f"s_sleep {cfg.zlsleep}" if cfg.zlsleep else ""}
    s_branch L_zl
    L_zlok:
    """)
    stamp(9)
    n = 0
    for row in range(2):
        for mt in range(2):
            n += 1
            a(f"s_waitcnt lgkmcnt({4-n})")
            for c in range(2):
                a(f"v_mfma_f32_16x16x32_bf16 {vr(G+16*row+8*mt+4*c,4)}, {vr(ZA+8*row+4*mt,4)}, {vr(CS1+4*c,4)}, 0")
    GP, TM, YO = 64, 96, 160
    def fin(row):
        for nt in range(2):
            y = YO+8*row+4*nt
            a(f"v_cvt_pk_bf16_f32 v{y}, v{y}, v{y+1}\nv_cvt_pk_bf16_f32 v{y+1}, v{y+2}, v{y+3}")
            a(f"global_store_dwordx2 v{rO+row}, {vr(y,2)}, s[20:21] offset:{1024+512*nt} {cfg.out_flag}")
    for row in range(2):
        for mt in range(2):
            re, im = G+16*row+8*mt, G+16*row+8*mt+4
            for h in range(2):
                tc = vr(TWC+4*mt+2*h, 2)
                a(f"v_pk_mul_f32 {vr(TM+4*h,2)}, {vr(re+2*h,2)}, {tc}")
                a(f"v_pk_mul_f32 {vr(TM+4*h+2,2)}, {vr(im+2*h,2)}, {tc}")
            for h in range(2):
                ts = vr(TWS+4*mt+2*h, 2)
                a(f"v_pk_fma_f32 {vr(TM+4*h,2)}, {vr(im+2*h,2)}, {ts}, {vr(TM+4*h,2)}")
                a(f"v_pk_fma_f32 {vr(TM+4*h+2,2)}, {vr(re+2*h,2)}, {ts}, {vr(TM+4*h+2,2)} neg_lo:[1,0,0] neg_hi:[1,0,0]")
            p = GP + 8*row + 4*mt
            for h in range(2):
                a(f"v_cvt_pk_bf16_f32 v{p+h}, v{TM+4*h}, v{TM+4*h+1}")
                a(f"v_cvt_pk_bf16_f32 v{p+2+h}, v{TM+4*h+2}, v{TM+4*h+3}")
            if (row, mt) == (1, 0): fin(0)
            for nt in range(2):
                d = vr(YO+8*row+4*nt, 4)
                a(f"v_mfma_f32_16x16x32_bf16 {d}, {vr(p,4)}, {vr(CS2+8*nt+4*mt,4)}, {d if mt else 0}")
    a(f"""
    s_cmp_lg_u32 s42, 0
    s_cbranch_scc1 L_noepoch
    v_mov_b32 v7, 0
    s_mov_b64 exec, 1
    global_store_dword v7, v{rGV}, s[44:45]
    s_mov_b64 exec, -1
    L_noepoch:
    s_nop 5
    """)
    fin(1)
    stamp_out(10)
    a("L_exit:\ns_endpgm")
    a(f"""
    L_kvretry:
    global_load_dword v34, v11, s[46:47] offset:{CF_KV} sc1
    s_add_u32 s52, s52, 1
    s_waitcnt vmcnt(0)
    v_cmp_ne_u32 vcc, s29, v34
    s_cbranch_vccz L_kvdone
    s_cmp_gt_u32 s52, {cfg.timeout}
    s_cbranch_scc0 L_kvretry
    s_branch L_kvcheck
    L_kvdone:
    s_cmp_lg_u32 s49, 0
    s_cbranch_scc1 L_kvokB
    s_branch L_kvokA
    L_kvcheck:
    {BOUND}
    s_xor_b32 s55, s27, 0x5bd1e995
    v_mov_b32 v36, s55
    v_mov_b32 v37, s29
    s_lshl_b32 s40, s25, 3
    v_mov_b32 v38, s40
    s_mov_b64 exec, 1
    global_store_dwordx2 v38, v[36:37], s[46:47] offset:{CF_HELLO} sc1
    s_mov_b64 exec, -1
    v_lshlrev_b32 v38, 1, v11
    global_load_dwordx2 v[36:37], v38, s[46:47] offset:{CF_HELLO} sc1
    s_waitcnt vmcnt(0)
    v_cmp_eq_u32 s[56:57], s55, v36
    v_cmp_ne_u32 vcc, s29, v37
    s_and_b64 s[56:57], s[56:57], vcc
    v_xor_b32 v37, s27, v37
    v_cmp_gt_u32 vcc, 16, v37
    s_and_b64 s[56:57], s[56:57], vcc
    s_cbranch_scc1 L_goslow
    s_sleep 8
    s_branch L_kvretry
    L_goslow:
    s_mov_b32 s53, 1
    s_mov_b32 s29, s27
    v_mov_b32 v33, s27
    v_mov_b32 v36, {FL+80}
    ds_write_b32 v36, v35
    v_add_u32 v9, {KVS}, v9
    v_add_u32 v14, {KVS}, v14
    v_add_u32 v15, {KVS}, v15
    global_store_dwordx4 v9, {vr(KVP,4)}, s[22:23] sc1
    global_store_dwordx4 v9, {vr(KVP+4,4)}, s[22:23] offset:1024 sc1
    s_lshl2_add_u32 s40, s25, s26
    s_lshl_b32 s40, s40, 2
    v_mov_b32 v36, s40
    v_lshlrev_b32 v37, 3, v2
    s_waitcnt vmcnt(0) lgkmcnt(0)
    s_mov_b64 exec, 1
    global_store_dword v36, v33, s[46:47] offset:{CF_SLOW+CF_KV} sc1
    s_mov_b64 exec, -1
    L_kvslowpoll:
    global_load_dwordx2 v[38:39], v37, s[46:47] offset:{CF_SLOW+CF_KV} sc1
    s_waitcnt vmcnt(0)
    v_cmp_ne_u32 vcc, s29, v38
    v_cmp_ne_u32 s[56:57], s29, v39
    s_or_b64 vcc, vcc, s[56:57]
    s_cbranch_scc0 L_kvdone
    {BOUND}
    s_sleep 8
    s_branch L_kvslowpoll
    """)
    for s in slow_stubs: a(s)
    a('L_code_end:')
    hdr = open("concat_heads__ssm_conv_h3__spectral_fnet__prompt.s.ref").read().split("; Override")[0]
    txt = hdr + f"; @launch grid=(256,1,1) block=(512,1,1) lds={LDS_BYTES}\n"
    txt += f""".amdgcn_target "amdgcn-amd-amdhsa--gfx950"
.text
.globl {KN}
.p2align 8
.type {KN},@function
{KN}:
""" + a.text() + f""".section .rodata,"a"
.p2align 6
.amdhsa_kernel {KN}
  .amdhsa_next_free_vgpr 256
  .amdhsa_next_free_sgpr 96
  .amdhsa_accum_offset 256
  .amdhsa_group_segment_fixed_size 0
  .amdhsa_kernarg_size 112
  .amdhsa_user_sgpr_count 2
  .amdhsa_user_sgpr_kernarg_segment_ptr 1
  .amdhsa_system_sgpr_workgroup_id_x 1
  .amdhsa_float_denorm_mode_32 3
.end_amdhsa_kernel
"""
    return txt, a

if __name__ == "__main__":
    cfg = Cfg()
    out = sys.argv[1]
    for kv in sys.argv[2:]:
        k, v = kv.split("=")
        cur = getattr(cfg, k)
        setattr(cfg, k, (v == "1") if isinstance(cur, bool) else type(cur)(v))
    txt, a = gen(cfg)
    bad = check_inflight(a)
    for b in bad: print("INFLIGHT:", b)
    assert not bad
    open(out, "w").write(txt)
    print("instructions:", sum(1 for i in a.ins if not (i.label or i.directive)), "pad states:", a.pads)
```

```python
import sys, struct
from asmlib import *

KN = "concat_heads__ssm_conv_h3__spectral_fnet__prompt_kernel"
def f32(x): return "0x%08x" % struct.unpack("<I", struct.pack("<f", x))[0]

class Cfg:
    stamps = False
    cyc = False
    probe = ''
    zfs = 7
    timeout = 64
    force_slow = False
    out_flag = "nt"
    xflag = ""
    conv_prio = 0
    fnet_prio = 0
    pf = 5
    apre = 40
    aper = 1
    z32 = 1
    gperm = 0
    noq = 0
    xout = 2
    fout_flag = 'nt'
    pollpos = 2
    nrep = 4
    repsleep = 0
    spoll = 3
    xs = 1
    xrot = 0
    align = 0
    zld = 'sc1'
    poll_at = 112
    zgate = 2
    touch = 0
    fpre = 0
    addr_at = 0
    npre = 2
    cpf = 2
    lead = 9
    px_at = 90
    nos = 0
    gxor = 0
    nmid = 1
    hpos = 0
    aux_prio = 1
    aux_drop = 1
    gate = 138
    zlsleep = 1
    lzpos = 2
    pflag = 'nt'
    qpos = 0
    sflag = ''
    ppos = 0
    zearly = 0
    nofnet2 = False

KVF = 0x000000
ZF = 0x200000
CF = 0x240000
FE = 0x250000
Z1W = 0x280000
SPARE = 0x480000
KVS = 0x600000
DUMMY = 0xa00000
ALT = 0xe00000
CF_KV, CF_Z, CF_Y = 0, 512, 1024
CF_SLOW = 1536
CF_HELLO = 3072
STAMP = 0x4000000
HC, HCS, HCH = 0, 4160, 16640
XI, XIS = 33280, 4672
PX = XI + 2*XIS
XT = PX + 16384
ZL = XT + 8192
FL = ZL + 16384
LDS_BYTES = FL + 128
S0, S1 = (0, 3, 4, 7), (1, 2, 5, 6)
SENT = 0x7f817f81
BOUND = "s_add_u32 s58, s58, 1\ns_cmp_gt_u32 s58, 0x40000\ns_cbranch_scc1 L_exit\n"
TAG = "s_mul_i32 s27, s27, 0x9e3779b1\ns_add_u32 s27, s27, 0x7f4a7c15\n"

def gen(cfg):
    a = Asm()
    role = ['c']
    uid = [0]
    extra = set()
    def stamp(i):
        extra.add((role[0], i))
        if cfg.stamps or (cfg.probe and (i == 0 or cfg.probe == role[0] + str(i))):
            a(f"{'s_memtime' if cfg.cyc else 's_memrealtime'} s[{60+2*i}:{61+2*i}]")
    def stamp_out(n):
        uid[0] += 1
        if cfg.probe:
            i = int(cfg.probe[1:]) if cfg.probe[0] == role[0] else 0
            a("s_waitcnt vmcnt(0)")
            stamp(n)
            a(f"""
            s_waitcnt lgkmcnt(0)
            s_sub_u32 s40, s{60+2*i}, s60
            s_lshl_b32 s40, s40, 2
            s_add_u32 s40, s40, 2000
            L_probe_{uid[0]}:
            s_sleep 1
            s_memrealtime s[42:43]
            s_waitcnt lgkmcnt(0)
            s_sub_u32 s41, s42, s60
            s_cmp_lt_u32 s41, s40
            s_cbranch_scc1 L_probe_{uid[0]}
            """)
            return
        if not cfg.stamps: return
        a("s_waitcnt vmcnt(0)")
        stamp(n)
        a("s_waitcnt lgkmcnt(0)")
        for i in range(16):
            a(f"v_mov_b32 v{40+i}, s{60+2*i}" if (role[0], i) in extra else f"v_mov_b32 v{40+i}, s60")
        a(f"""
        s_lshl_b32 s40, s2, 2
        s_add_u32 s40, s40, s26
        s_lshl_b32 s40, s40, 6
        s_add_u32 s40, s40, {STAMP + (0 if role[0] == 'c' else 256*4*64)}
        v_mov_b32 v1, s40
        s_mov_b64 exec, 1
        global_store_dwordx4 v1, v[40:43], s[22:23]
        global_store_dwordx4 v1, v[44:47], s[22:23] offset:16
        global_store_dwordx4 v1, v[48:51], s[22:23] offset:32
        global_store_dwordx4 v1, v[52:55], s[22:23] offset:48
        """)
    def unp(dst, src): a(f"v_lshlrev_b32 v{dst}, 16, v{src}\nv_and_b32 v{dst+1}, 0xffff0000, v{src}")
    XCC = "s_and_b32 s28, s25, 1" if cfg.force_slow else "s_getreg_b32 s28, hwreg(HW_REG_XCC_ID, 0, 4)"
    LSB = 11 if cfg.xout else 7
    GSH = 7 if cfg.xout else 18
    XBASE = "s[18:19]" if cfg.xout == 2 else "s[20:21]" if cfg.xout else "s[22:23]"
    XSEL = f"""
    s_add_u32 s18, s22, {ALT-128}
    s_addc_u32 s19, s23, 0
    s_cmp_eq_u32 s24, 3
    s_cselect_b64 s[18:19], s[18:19], s[20:21]
    """ if cfg.xout == 2 else ""
    def gather_addr(va, tmp):
        return f"""
        s_lshl_b32 s40, s24, {GSH}
        s_lshr_b32 s41, s25, 1
        s_lshl_b32 s41, s41, {LSB}
        s_add_u32 s51, s40, s41
        s_and_b32 s41, s25, 1
        s_lshl_b32 s41, s41, 6
        s_add_u32 s51, s51, s41
        s_lshl_b32 s41, s26, {LSB+9}
        s_add_u32 s41, s41, s51
        v_and_b32 v{tmp}, 3, v0
        v_lshl_add_u32 v{tmp}, v{tmp}, 4, s41
        v_bfe_u32 v{va}, v0, 2, 4
        v_lshl_add_u32 v{va}, v{va}, {LSB+4}, v{tmp}
        v_add_u32 v{va+1}, {256 << LSB}, v{va}
        """
    K0, V0, W0 = 128, 140, 148
    KVP, DD = 16, 32
    ACC, BR, NB, AF = 36, 68, 12, 128
    YA = 120
    vm = Vm(a)
    if cfg.align:
        a(f"""
        s_memrealtime s[4:5]
        s_and_b32 s7, s2, 7
        s_mul_i32 s7, s7, {cfg.align-1}
        s_waitcnt lgkmcnt(0)
        s_add_u32 s6, s4, 0x1100
        s_and_b32 s6, s6, 0xfffff000
        s_add_u32 s6, s6, s7
        L_align:
        s_memrealtime s[4:5]
        s_waitcnt lgkmcnt(0)
        s_sub_u32 s4, s4, s6
        s_cmp_lt_i32 s4, 0
        s_cbranch_scc1 L_align
        s_branch L_start
        .p2align 12
        L_start:
        """)
    stamp(0)
    a(f"""
    s_load_dwordx16 s[4:19], s[0:1], 0
    s_load_dwordx2 s[22:23], s[0:1], 104
    s_load_dwordx2 s[20:21], s[0:1], 88
    s_cmp_ge_u32 s2, 256
    s_cbranch_scc1 L_exit
    v_lshrrev_b32 v2, 6, v0
    v_and_b32 v1, 15, v0
    v_readfirstlane_b32 s26, v2
    s_and_b32 s24, s2, 7
    {f"s_xor_b32 s24, s24, {cfg.gxor}" if cfg.gxor else ""}
    {"s_lshl_b32 s24, s24, 2" if cfg.gperm else ""}
    {"s_lshr_b32 s24, 0x65421073, s24" if cfg.gperm else ""}
    {"s_and_b32 s24, s24, 7" if cfg.gperm else ""}
    s_lshr_b32 s25, s2, 3
    s_cmp_ge_u32 s26, 4
    s_cbranch_scc1 L_fnet
    s_getpc_b64 s[30:31]
    L_pc:
    v_lshlrev_b32 v3, 7, v0
    v_min_u32 v3, L_code_end-L_pc-4, v3
    """)
    if cfg.cpf == 1: vm.issue("global_load_dword v255, v3, s[30:31]")
    if cfg.cpf == 2:
        a("""
        s_lshl2_add_u32 s40, s25, s26
        s_lshl_b32 s40, s40, 7
        s_min_u32 s40, s40, L_code_end-L_pc-4
        v_mov_b32 v3, s40
        """)
        vm.issue("global_load_dword v255, v3, s[30:31]")
    if cfg.cpf == 3:
        a("""
        s_and_b32 s40, s25, 3
        s_lshl2_add_u32 s40, s40, s26
        s_lshl_b32 s40, s40, 10
        v_and_b32 v3, 7, v0
        v_lshl_add_u32 v3, v3, 7, s40
        v_min_u32 v3, L_code_end-L_pc-4, v3
        """)
        vm.issue("global_load_dword v255, v3, s[30:31]")
    a(f"""
    s_lshr_b32 s43, s25, 1
    {"s_add_u32 s41, s24, s43" if cfg.xrot else f"s_xor_b32 s41, s24, {cfg.xs}"}
    s_and_b32 s41, s41, 7
    s_lshl3_add_u32 s41, s43, s41
    s_and_b32 s42, s25, 1
    s_lshl1_add_u32 s42, s41, s42
    s_lshl_b32 s42, s42, 6
    s_lshl_b32 s41, s24, 7
    v_bfe_u32 v9, v0, 2, 4
    v_lshl_add_u32 v9, v2, 5, v9
    v_and_b32 v15, 3, v0
    v_lshl_add_u32 v10, v15, 4, s42
    v_lshl_add_u32 v9, v9, 14, v10
    v_add_u32 v10, 0x40000, v9
    s_lshl_b32 s43, s26, 11
    s_add_u32 m0, s43, {XT}
    v_lshrrev_b32 v3, 5, v0
    v_and_b32 v4, 31, v0
    s_lshl_b32 s40, s25, 16
    s_add_u32 s40, s40, 4096
    v_lshl_add_u32 v7, v4, 2, s41
    v_lshl_add_u32 v5, v3, 13, s40
    v_add_u32 v5, v5, v7
    v_add_u32 v6, 0xffffe400, v5
    v_lshlrev_b32 v8, 2, v7
    s_lshl_b32 s40, s24, {GSH}
    s_lshl_b32 s42, s25, {LSB+6}
    s_add_u32 s40, s40, s42
    v_and_b32 v11, 7, v0
    v_lshl_add_u32 v11, v11, 4, s40
    v_lshrrev_b32 v12, 3, v0
    v_lshl_add_u32 v11, v12, {LSB}, v11
    v_add_u32 v12, {32 << LSB}, v11
    s_mov_b32 s59, {SENT}
    v_mov_b32 v124, s59
    v_mov_b32 v125, s59
    v_mov_b32 v126, s59
    v_mov_b32 v127, s59
    s_mov_b32 s34, 0x200000
    s_mov_b32 s35, 0x20000
    s_waitcnt lgkmcnt(0)
    """)
    vm.issue("global_load_lds_dwordx4 v9, s[16:17]")
    a(f"s_add_u32 m0, s43, {XT+1024}\ns_mov_b64 s[32:33], s[6:7]")
    vm.issue("global_load_lds_dwordx4 v10, s[16:17]")
    if cfg.pollpos == 2:
        a(f"""
        s_lshl_b32 s42, s24, 12
        s_add_u32 s42, s42, {CF}
        s_mul_i32 s43, s25, 43
        s_lshr_b32 s43, s43, 7
        s_mul_i32 s43, s43, 3
        s_sub_u32 s43, s25, s43
        s_lshl2_add_u32 s43, s43, s26
        s_lshl_b32 s43, s43, 7
        s_add_u32 s42, s42, s43
        v_lshl_add_u32 v13, v15, 5, s42
        """)
        tP = vm.issue(f"global_load_dword v34, v13, s[22:23]")
    a(XSEL)
    vm.issue(f"global_store_dwordx4 v11, v[124:127], {XBASE}")
    tS = vm.issue(f"global_store_dwordx4 v12, v[124:127], {XBASE}")
    a(f"""
    s_add_u32 s44, s22, {FE}
    s_addc_u32 s45, s23, 0
    s_load_dword s27, s[44:45], 0
    s_barrier
    """)
    tW = vm.issue(f"global_load_dwordx4 {vr(W0,4)}, v8, s[10:11]")
    stamp(1)
    tK = []
    for j in range(3): tK.append(vm.issue(f"buffer_load_dword v{K0+j}, v6, s[32:35], 0 offen offset:{1024*j}"))
    for j in range(8): tK.append(vm.issue(f"global_load_dword v{K0+3+j}, v5, s[6:7] offset:{1024*j-4096}"))
    tV = [vm.issue(f"global_load_dword v{V0+j}, v5, s[8:9] offset:{1024*j-4096}") for j in range(8)]
    vm.issue(f"global_load_dword v{DD}, v7, s[14:15]")
    if cfg.conv_prio: a(f"s_setprio {cfg.conv_prio}")
    a(f"""
    s_mov_b32 s58, 0
    {XCC}
    s_lshl_b32 s42, s24, 12
    s_add_u32 s42, s42, {CF}
    s_add_u32 s46, s22, s42
    s_addc_u32 s47, s23, 0
    s_mov_b64 s[36:37], {XBASE}
    s_mov_b64 s[38:39], {XBASE}
    v_mov_b64 v[36:37], 0
    v_mov_b64 v[38:39], 0
    v_and_b32 v9, 1, v3
    v_mul_u32_u24 v9, {XIS}, v9
    v_lshl_add_u32 v9, v4, 4, v9
    v_add_u32 v9, {XI}, v9
    v_lshrrev_b32 v10, 1, v1
    v_mul_u32_u24 v10, {HCS}, v10
    v_and_b32 v11, 1, v0
    v_lshl_add_u32 v10, v11, 4, v10
    v_cmp_gt_u32 vcc, 64, v0
    v_cndmask_b32 v9, v10, v9, vcc
    v_and_b32 v10, 7, v0
    v_lshlrev_b32 v10, 4, v10
    v_add_u32 v10, {FL}, v10
    v_cmp_gt_u32 vcc, 128, v0
    v_cndmask_b32 v9, v10, v9, vcc
    ds_write_b128 v9, v[36:39]
    s_lshl_b32 s42, s25, 2
    v_lshl_add_u32 v10, v1, 7, s42
    s_waitcnt lgkmcnt(0)
    {TAG}
    s_xor_b32 s29, s27, s28
    v_mov_b32 v33, s29
    s_mov_b64 exec, {(1 << cfg.nrep) - 1}
    s_waitcnt {vm.cnt(tS)}
    s_barrier
    """)
    vm.issue(f"global_store_dword v10, v33, s[46:47] offset:{CF_KV}")
    a("s_mov_b64 exec, -1")
    if cfg.pollpos == 0:
        a("v_lshlrev_b32 v11, 2, v4")
        if cfg.nrep > 1: a("v_lshl_add_u32 v11, v2, 7, v11")
        tP = vm.issue(f"global_load_dword v34, v11, s[46:47] offset:{CF_KV} sc1")
    stamp(2)
    a(gather_addr(14, 13))
    a(f"""
    s_lshr_b32 s48, s26, 1
    s_and_b32 s49, s26, 1
    s_lshl2_add_u32 s41, s25, s26
    s_lshl_b32 s41, s41, {LSB+4}
    s_add_u32 s41, s41, s40
    v_lshlrev_b32 v25, 10, v3
    v_lshl_add_u32 v25, v4, 2, v25
    v_lshlrev_b32 v11, 2, v4
    v_bfe_u32 v3, v0, 4, 2
    v_lshrrev_b32 v9, 1, v1
    v_lshl_add_u32 v9, v9, {LSB}, s41
    v_and_b32 v13, 1, v0
    v_lshl_add_u32 v9, v13, 6, v9
    v_bfe_u32 v13, v0, 4, 1
    v_lshl_add_u32 v9, v13, 5, v9
    v_bfe_u32 v12, v0, 5, 1
    v_lshl_add_u32 v9, v12, 4, v9
    v_add_u32 v29, {8 << LSB}, v9
    v_and_b32 v2, 63, v0
    v_and_b32 v13, 3, v0
    v_sub_u32 v12, 3, v13
    v_mul_u32_u24 v12, {HCS}, v12
    v_or_b32 v13, 3, v1
    v_lshl_add_u32 v12, v13, 1, v12
    v_lshl_add_u32 v12, v3, 4, v12
    s_mul_i32 s42, s48, {HCH}
    s_lshl_b32 s41, s49, 8
    s_add_u32 s42, s42, s41
    s_add_u32 s42, s42, {HC+2}
    v_add_u32 v12, s42, v12
    s_mul_i32 s42, s48, {XIS}
    s_sub_u32 s42, s42, s41
    s_add_u32 s42, s42, {XI+512-176}
    v_lshlrev_b32 v13, 1, v1
    v_sub_u32 v13, v13, v3
    v_lshl_add_u32 v13, v13, 4, s42
    v_bfe_u32 v24, v0, 1, 1
    v_mul_u32_u24 v24, {XIS}, v24
    v_bfe_u32 v26, v0, 2, 4
    v_lshl_add_u32 v24, v26, 5, v24
    v_and_b32 v26, 1, v0
    v_lshl_add_u32 v24, v26, 4, v24
    s_lshl_b32 s41, s26, 10
    v_add_u32 v24, s41, v24
    s_mov_b32 s52, 0
    s_mov_b32 s53, 0
    s_lshl_b32 s41, s26, 12
    s_add_u32 s41, s41, {PX}
    v_lshl_add_u32 v8, v2, 4, s41
    s_xor_b32 s41, s26, 1
    s_lshl_b32 s41, s41, 12
    s_add_u32 s41, s41, {PX}
    v_lshl_add_u32 v6, v2, 4, s41
    s_lshl2_add_u32 s41, s26, {FL}
    v_mov_b32 v10, s41
    v_and_b32 v4, 7, v0
    v_lshlrev_b32 v4, 2, v4
    v_add_u32 v4, {FL}, v4
    v_mov_b32 v26, {FL+32}
    v_mov_b32 v35, 1
    v_mov_b32 v30, s29
    v_mov_b32 v31, s29
    s_mov_b32 s50, 0
    """)
    WP, KF, VF, AC = 152, 160, 184, 200
    vm.wait(tW)
    for j in range(4):
        for ch in range(2):
            src = W0 + 2*ch + (j >> 1)
            if j & 1: a(f"v_and_b32 v{WP+2*j+ch}, 0xffff0000, v{src}")
            else:     a(f"v_lshlrev_b32 v{WP+2*j+ch}, 16, v{src}")
    def rows(ns):
        for j in (3, 2, 1, 0):
            for n in ns:
                k = vr(KF + 2*(n + 3 - j), 2); w = vr(WP + 2*j, 2); d = vr(AC + 2*n, 2)
                if j == 3: a(f"v_pk_mul_f32 {d}, {k}, {w}")
                else:      a(f"v_pk_fma_f32 {d}, {k}, {w}, {d}")
    vm.wait(tK[6])
    for n in range(7): unp(KF+2*n, K0+n)
    rows(range(4))
    vm.wait(tK[10])
    stamp(3)
    for n in range(7, 11): unp(KF+2*n, K0+n)
    rows(range(4, 8))
    vm.wait(tV[3])
    SP = f"s_load_dwordx16 s[4:19], s[46:47], {CF_KV}\ns_load_dwordx16 s[84:99], s[46:47], {CF_KV+64}"
    if cfg.spoll == 1: a(SP)
    for n in range(4): unp(VF+2*n, V0+n)
    for n in range(4): a(f"v_pk_mul_f32 {vr(AC+2*n,2)}, {vr(AC+2*n,2)}, {vr(VF+2*n,2)}")
    for q in (2, 3):
        for ch in range(2):
            a(f"v_cvt_pk_bf16_f32 v{KVP+4*ch+q}, v{AC+2*(7-2*q)+ch}, v{AC+2*(6-2*q)+ch}")
    if cfg.pollpos == 1: tP = vm.issue(f"global_load_dword v34, v11, s[46:47] offset:{CF_KV} sc1")
    for q in (2, 3): a(f"v_permlane16_swap_b32 v{KVP+q}, v{KVP+4+q}")
    vm.wait(tV[7])
    if cfg.spoll == 2: a(SP)
    for n in range(4, 8): unp(VF+2*n, V0+n)
    for n in range(4, 8): a(f"v_pk_mul_f32 {vr(AC+2*n,2)}, {vr(AC+2*n,2)}, {vr(VF+2*n,2)}")
    for q in (0, 1):
        for ch in range(2):
            a(f"v_cvt_pk_bf16_f32 v{KVP+4*ch+q}, v{AC+2*(7-2*q)+ch}, v{AC+2*(6-2*q)+ch}")
    for q in (0, 1): a(f"v_permlane16_swap_b32 v{KVP+q}, v{KVP+4+q}")
    for n in range(2):
        vm.issue(f"global_store_dwordx4 v{(9, 29)[n]}, {vr(KVP+4*n,4)}, s[36:37]")
    if cfg.spoll == 3: a(SP)
    stamp(4)
    if cfg.spoll:
        a("L_look:\ns_waitcnt lgkmcnt(0)")
        for i in list(range(4, 20, 2)) + list(range(84, 100, 2)):
            a(f"v_cmpx_eq_u64 vcc, s[{i}:{i+1}], v[30:31]")
        a(f"""
        s_cbranch_vccnz L_looked
        s_mov_b64 exec, -1
        s_add_u32 s50, s50, 128
        s_cmp_ge_u32 s50, {128*cfg.nrep}
        s_cbranch_scc1 L_kvretry
        {f"s_sleep {cfg.repsleep}" if cfg.repsleep else ""}
        s_add_u32 s41, s50, 64
        s_load_dwordx16 s[4:19], s[46:47], s50
        s_load_dwordx16 s[84:99], s[46:47], s41
        s_branch L_look
        L_looked:
        """)
    a(f"""
    s_cmp_lg_u32 s49, 0
    s_cbranch_scc1 L_convB
    """)
    pollcnt = vm.cnt(tP)
    slow_stubs = []
    def conv_variant(own, foreign, tg):
        XL = 100
        a(f"""
        {"" if cfg.spoll else f"s_waitcnt {pollcnt}"}
        {"" if cfg.spoll else "v_cmp_ne_u32 vcc, s29, v34"}
        {"" if cfg.spoll else "s_cbranch_vccnz L_kvretry"}
        L_kvok{tg}:
        global_load_dwordx4 {vr(XL,4)}, v14, s[36:37] sc1
        global_load_dwordx4 {vr(XL+4,4)}, v15, s[36:37] sc1
        """)
        stamp(5)
        a(f"""
        s_lshl_b32 s42, s48, 5
        s_add_u32 s41, s51, s42
        v_lshl_add_u32 v27, v1, {LSB+4}, s41
        v_lshl_add_u32 v27, v3, 3, v27
        v_add_u32 v{YA}, {own[0] << (LSB+8)}, v27
        v_add_u32 v{YA+1}, {own[1] << (LSB+8)}, v27
        v_add_u32 v{YA+2}, {own[2] << (LSB+8)}, v27
        v_add_u32 v{YA+3}, {own[3] << (LSB+8)}, v27
        s_mul_i32 s54, s53, {CF_SLOW}
        s_lshr_b32 s40, s25, 3
        s_lshl_b32 s40, s40, 7
        s_add_u32 s40, s40, s54
        v_add_u32 v11, s40, v11
        s_barrier
        """)
        seq = []
        for ph, tiles in ((0, foreign), (1, own)):
            for v in range(max(tiles) + 1):
                for rr in range(4):
                    seq.append((ph, v, rr, [j for j in tiles if j >= v]))
        aorder = []
        for (ph, v, rr, tiles) in seq:
            for j in tiles:
                if (j - v, rr) not in aorder: aorder.append((j - v, rr))
        areads = []
        for (u, rr) in aorder:
            f = AF + 4*(4*u + rr)
            areads.append(((u, rr, 0), f"ds_read_b64 {vr(f,2)}, v12 offset:{512*u+64*rr}"))
            areads.append(((u, rr, 1), f"ds_read_b64 {vr(f+2,2)}, v12 offset:{512*u+64*rr+8}"))
        lg = Lgkm(a)
        atok = {}
        def ard(n):
            for _ in range(n):
                if areads:
                    k, t = areads.pop(0)
                    atok[k] = lg.issue(t)
        ard(cfg.apre)
        a(f"""
        L_xpoll{tg}:
        s_waitcnt vmcnt(0)
        """)
        for i in range(8): a(f"v_cmpx_ne_u32 vcc, s59, v{XL+i}")
        a(f"""
        s_not_b64 exec, vcc
        s_cbranch_scc0 L_xok{tg}
        global_load_dwordx4 {vr(XL,4)}, v14, s[36:37] sc1
        global_load_dwordx4 {vr(XL+4,4)}, v15, s[36:37] sc1
        s_mov_b64 exec, -1
        {BOUND}
        s_branch L_xpoll{tg}
        L_xok{tg}:
        s_mov_b64 exec, -1
        """)
        stamp(6)
        lg.issue(f"ds_write_b128 v24, {vr(XL,4)} offset:{XI+512}")
        t = lg.issue(f"ds_write_b128 v24, {vr(XL+4,4)} offset:{XI+512+512}")
        a(f"v_add_u32 v25, {XT}, v25")
        lg.wait(t)
        a("s_barrier")
        stamp(7)
        vm = Vm(a)
        st = {}
        def accreg(ph, j):
            tiles = own if ph else foreign
            return ACC + 16*ph + 4*tiles.index(j)
        mf = []
        first, last, done = {}, {}, {}
        deferred = []
        for i, (ph, v, rr, tiles) in enumerate(seq):
            if ph == 1 and own == S1 and v == 6 and deferred:
                mf += deferred; deferred = []
            for j in tiles:
                if ph == 1 and own == S1 and j == 6 and v in (4, 5): deferred.append((i, ph, j, j - v, rr))
                else: mf.append((i, ph, j, j - v, rr))
        for n, (i, ph, j, u, rr) in enumerate(mf):
            first.setdefault(i, n); last[i] = n
            done[ph, j] = n
        afirst = {}
        for n, (i, ph, j, u, rr) in enumerate(mf): afirst.setdefault((u, rr), n)
        tok = {}
        jobs = []
        def bread(i):
            ph, v, rr, _ = seq[i]
            def f(): tok[i] = lg.issue(f"ds_read_b128 {vr(BR+4*(i % NB),4)}, v13 offset:{512*v+64*(3-rr)}")
            return f
        npre = sum(1 for i in range(len(seq)) if first[i] <= cfg.lead)
        for i in range(npre): bread(i)()
        for i in range(npre, len(seq)):
            jobs.append([first[i] - cfg.lead, last[i - NB] if i >= NB else 0, bread(i)])
        for k, t in areads:
            def f(k=k, t=t): atok[k] = lg.issue(t)
            jobs.append([afirst[k[:2]] - cfg.lead, 0, f])
        for j in foreign:
            def f(j=j): lg.issue(f"ds_write_b128 v8, {vr(accreg(0,j),4)} offset:{1024*foreign.index(j)}")
            jobs.append([done[0, j] + 6, done[0, j] + 5, f])
        jobs.append([done[0, max(foreign)] + 7.5, done[0, max(foreign)] + 7, lambda: lg.issue("ds_write_b32 v10, v35")])
        pxr = ["ds_read_b32 v34, v4"] + [f"ds_read_b128 {vr(ACC+4*t,4)}, v6 offset:{1024*t}" for t in range(4)]
        for n, x in enumerate(pxr):
            def f(x=x): st["px"] = lg.issue(x)
            jobs.append([cfg.px_at + n, cfg.px_at + n, f])
        if cfg.gate: jobs.append([cfg.gate, cfg.gate, lambda: lg.issue("ds_write_b32 v10, v35 offset:64")])
        Q0 = 248
        qreads = ["ds_read_b32 v28, v26"] + [f"ds_read2_b32 {vr(Q0+2*i,2)}, v25 offset0:{64*i} offset1:{64*i+32}" for i in range(4)]
        for n, x in enumerate(qreads):
            jobs.append([200 + n, 143, lambda x=x: lg.issue(x)])
        vjobs = []
        def chk_px():
            lg.wait(st["px"])
            a(f"""
            v_cmp_ne_u32 vcc, 1, v34
            s_cbranch_vccnz L_pxretry{tg}
            L_pxok{tg}:
            """)
            slow_stubs.append(f"L_pxretry{tg}:\n" + BOUND + "\n".join(pxr) + f"""
            s_waitcnt lgkmcnt(0)
            v_cmp_ne_u32 vcc, 1, v34
            s_cbranch_vccnz L_pxretry{tg}
            s_branch L_pxok{tg}
            """)
        vjobs.append([cfg.px_at + 4 + cfg.lead, chk_px])
        ystores = []
        for t, j in enumerate(own):
            r = accreg(1, j); p = ACC + 4*t
            e = done[1, j] + 5
            vjobs.append([e, lambda p=p, r=r: a(f"v_add_f32 v{p}, v{p}, v{r}\nv_add_f32 v{p+1}, v{p+1}, v{r+1}")])
            vjobs.append([e, lambda p=p, r=r: a(f"v_add_f32 v{p+2}, v{p+2}, v{r+2}\nv_add_f32 v{p+3}, v{p+3}, v{r+3}")])
            vjobs.append([e, lambda p=p: a(f"v_cvt_pk_bf16_f32 v{p}, v{p}, v{p+1}\nv_cvt_pk_bf16_f32 v{p+1}, v{p+2}, v{p+3}")])
            ystores.append(f"global_store_dwordx2 v{YA+t}, {vr(p,2)}")
            vjobs.append([e, lambda x=ystores[-1]: vm.issue(f"{x}, s[38:39] {cfg.xflag}")])
            if t == 0:
                def clrpoll(): st["poll"] = vm.issue(f"global_load_dword v14, v11, s[46:47] offset:{CF_Y} sc1")
                vjobs.append([cfg.poll_at, clrpoll])
        issued_at = {}
        def need(n):
            i, ph, j, u, rr = mf[n]
            return max(tok[i], atok[(u, rr, 1)])
        def slack(n):
            dl = sorted(x[0] for x in jobs)
            return all(d > n + k for k, d in enumerate(dl))
        started = set()
        late = 0
        lg.wait(need(0))
        for n, (i, ph, j, u, rr) in enumerate(mf):
            d = vr(accreg(ph, j), 4)
            c = d if (ph, j) in started else "0"
            started.add((ph, j))
            a(f"v_mfma_f32_16x16x32_bf16 {d}, {vr(AF+4*(4*u+rr),4)}, {vr(BR+4*(i % NB),4)}, {c}")
            if n + 1 in (36, 72, 108): stamp({36: 13, 72: 14, 108: 15}[n + 1])
            issued_at[n] = lg.n
            nxt = mf[n + 1] if n + 1 < len(mf) else None
            ready = sorted([x for x in jobs if x[1] <= n], key=lambda x: x[0])
            mustwait = nxt is not None and nxt[0] in tok and (nxt[3], nxt[4], 1) in atok and need(n + 1) > lg.done
            if vjobs and vjobs[0][0] <= n and not mustwait and (slack(n) or not ready):
                vjobs.pop(0)[1]()
            elif ready:
                x = ready[0]
                if x[0] < n: late += 1
                jobs.remove(x); x[2]()
            elif vjobs and n < vjobs[0][0] <= n + 5 and not mustwait: a("s_nop 0")
            if nxt is not None:
                while nxt[0] not in tok or (nxt[3], nxt[4], 1) not in atok:
                    x = sorted([x for x in jobs if x[1] <= n], key=lambda x: x[0])[0]
                    jobs.remove(x); x[2](); late += 1
                if need(n + 1) > lg.done:
                    lg.wait(max(need(n + 1), issued_at.get(n - cfg.lead + 2, 0)))
        for x in sorted(jobs, key=lambda x: x[0]): x[2]()
        rest_v = len(vjobs)
        for x in vjobs: x[1]()
        print(f"variant {tg}: late LDS jobs {late}, vector jobs after the stream {rest_v}")
        a(f"""
        s_cmp_lg_u32 s53, 0
        s_cbranch_scc1 L_yslow{tg}
        L_yback{tg}:
        """)
        slow_stubs.append(f"L_yslow{tg}:\n" + "\n".join(x + ", s[36:37] sc1" for x in ystores) + f"\ns_waitcnt vmcnt(0)\ns_branch L_yback{tg}")
        stamp(8)
        QF, QT = 128, 144
        YL, YF = 72, 80
        vm.wait(st["poll"])
        a(f"""
        v_cmp_ne_u32 vcc, s29, v14
        s_cbranch_vccnz L_clrretry{tg}
        L_clrok{tg}:
        """)
        slow_stubs.append(f"""
        L_clrretry{tg}:
        {BOUND}
        global_load_dword v14, v11, s[46:47] offset:{CF_Y} sc1
        s_waitcnt vmcnt(0)
        v_cmp_ne_u32 vcc, s29, v14
        s_cbranch_vccnz L_clrretry{tg}
        s_branch L_clrok{tg}
        """)
        stamp(9)
        YLD = f"""
        global_load_dwordx4 {vr(YL,4)}, v9, s[36:37] sc1
        global_load_dwordx4 {vr(YL+4,4)}, v29, s[36:37] sc1
        """
        for q in range(4): a(f"v_permlane16_swap_b32 v{KVP+q}, v{KVP+4+q}")
        unp(36, DD)
        for ch in range(2):
            for q in range(4):
                a(f"v_lshlrev_b32 v{QT+2*(7-2*q)+ch}, 16, v{KVP+4*ch+q}\nv_and_b32 v{QT+2*(6-2*q)+ch}, 0xffff0000, v{KVP+4*ch+q}")
        a(YLD)
        a(f"""
        v_lshlrev_b32 v12, 1, v5
        v_sub_u32 v12, v12, v7
        v_add_u32 v12, 0xfffff000, v12
        v_add_u32 v13, 8192, v12
        s_waitcnt lgkmcnt(0)
        v_cmp_ne_u32 vcc, 1, v28
        s_cbranch_vccnz L_qretry{tg}
        L_qok{tg}:
        """)
        slow_stubs.append(f"L_qretry{tg}:\n" + BOUND + "\n".join(qreads) + f"""
        s_waitcnt lgkmcnt(0)
        v_cmp_ne_u32 vcc, 1, v28
        s_cbranch_vccnz L_qretry{tg}
        s_branch L_qok{tg}
        """)
        for n in range(8): unp(QF+2*n, Q0+n)
        for n in range(8): a(f"v_pk_mul_f32 {vr(QT+2*n,2)}, {vr(QT+2*n,2)}, v[36:37]")
        for n in range(8): a(f"v_pk_mul_f32 {vr(QT+2*n,2)}, {vr(QT+2*n,2)}, {vr(QF+2*n,2)}")
        stamp(10)
        a(f"""
        L_ypoll{tg}:
        s_waitcnt vmcnt(0)
        """)
        for i in range(8): a(f"v_cmpx_ne_u32 vcc, s59, v{YL+i}")
        a(f"""
        s_not_b64 exec, vcc
        s_cbranch_scc0 L_yok{tg}
        {YLD}
        s_mov_b64 exec, -1
        {BOUND}
        s_branch L_ypoll{tg}
        L_yok{tg}:
        s_mov_b64 exec, -1
        s_nop 0
        """)
        stamp(11)
        for q in range(4): a(f"v_permlane16_swap_b32 v{YL+q}, v{YL+4+q}")
        for q in range(4):
            a(f"v_lshlrev_b32 v{YF+4*q}, 16, v{YL+q}\nv_and_b32 v{YF+4*q+2}, 0xffff0000, v{YL+q}")
            a(f"v_lshlrev_b32 v{YF+4*q+1}, 16, v{YL+4+q}\nv_and_b32 v{YF+4*q+3}, 0xffff0000, v{YL+4+q}")
            for n in (2*q, 2*q+1):
                a(f"v_pk_fma_f32 {vr(YF+2*n,2)}, {vr(YF+2*n,2)}, {vr(QF+2*n,2)}, {vr(QT+2*n,2)}")
            for n in (2*q, 2*q+1):
                a(f"v_cvt_pk_bf16_f32 v{YF+2*n}, v{YF+2*n}, v{YF+2*n+1}")
            for n in (2*q, 2*q+1):
                a(f"global_store_dword {'v12' if n < 4 else 'v13'}, v{YF+2*n}, s[20:21] offset:{2048*(n&3)-4096} {cfg.out_flag}")
        stamp_out(12)
        a("s_endpgm")
    conv_variant(S0, S1, "A")
    a("L_convB:")
    conv_variant(S1, S0, "B")
    C1, BD, A1 = 16, 48, 80
    HD, HE, T = 128, 136, 140
    C0, CS1, TWC, TWS, CS2 = 192, 200, 208, 216, 224
    rFS, rLZ, rFV, rCL, rQ, rSE, rLF, rMD, rZA, rGZ, rGV, rZW, rZR, rZS = 108, 109, 110, 112, 114, 116, 120, 121, 122, 123, 124, 125, 126, 127
    rO, rZF, rONE, rLP, rP, rH, rE = 240, 242, 243, 244, 246, 247, 248
    HI, LO = ('v5', 'v6') if cfg.z32 else ('v9', 'v1')
    a("L_fnet:\ns_barrier")
    role[0] = 'f'
    vm = Vm(a)
    stamp(1)
    if cfg.fnet_prio: a(f"s_setprio {cfg.fnet_prio}")
    a(f"""
    v_and_b32 v0, 255, v0
    s_and_b32 s26, s26, 3
    v_and_b32 v2, 3, v2
    s_mov_b32 s58, 0
    s_lshr_b32 s57, s25, 1
    {"s_add_u32 s40, s24, s57" if cfg.xrot else f"s_xor_b32 s40, s24, {cfg.xs}"}
    s_and_b32 s40, s40, 7
    s_and_b32 s56, s25, 1
    s_lshl1_add_u32 s56, s40, s56
    s_waitcnt lgkmcnt(0)
    s_add_u32 s44, s22, {FE}
    s_addc_u32 s45, s23, 0
    s_load_dword s27, s[44:45], 0
    v_bfe_u32 v3, v0, 1, 4
    v_lshl_add_u32 v3, v2, 4, v3
    v_and_b32 v4, 1, v0
    v_bfe_u32 v5, v0, 5, 1
    v_mul_u32_u24 v6, s57, v3
    v_lshl_add_u32 v6, v4, 9, v6
    v_lshlrev_b32 v7, 4, v3
    v_and_b32 v8, 0xdf, v0
    v_cmp_eq_u32 vcc, 1, v8
    v_mov_b32 v9, 0x400
    v_cndmask_b32 v6, v6, 0, vcc
    v_cndmask_b32 v7, v7, v9, vcc
    v_lshlrev_b32 v9, 3, v5
    v_mad_u32_u24 v6, v9, v7, v6
    v_cvt_f32_u32 v6, v6
    v_cvt_f32_u32 v7, v7
    v_mul_f32 v10, {f32(1/2048)}, v6
    v_mul_f32 v7, {f32(1/2048)}, v7
    v_add_f32 v11, v10, v7
    v_add_f32 v12, v7, v7
    v_mov_b32 v13, v12
    v_mul_f32 v14, {f32(10.0)}, v7
    v_mov_b32 v15, v14
    v_and_b32 v8, 2, v0
    v_mul_u32_u24 v8, 0x4000, v8
    v_lshl_or_b32 v8, v8, 16, v8
    """)
    for ks in range(4):
        for i2 in range(4):
            a(f"v_cos_f32 v100, v10\nv_cos_f32 v101, v11")
            if not (ks == 3 and i2 == 3):
                a(f"v_pk_add_f32 v[10:11], v[10:11], {'v[12:13]' if i2 < 3 else 'v[14:15]'}")
            a(f"v_cvt_pk_bf16_f32 v{C1+4*ks+i2}, v100, v101")
    a(f"""
    v_and_b32 v6, 31, v0
    v_bfe_u32 v9, v0, 4, 2
    v_bfe_u32 v7, v0, 2, 2
    v_lshl_add_u32 v3, v5, 3, v7
    v_lshlrev_b32 v3, 6, v3
    v_and_b32 v10, 1, v9
    v_lshl_add_u32 v3, v10, 5, v3
    v_and_b32 v10, 3, v0
    v_lshl_add_u32 v3, v10, 3, v3
    v_add_u32 v3, {XT}, v3
    v_lshlrev_b32 v{rH}, 4, v0
    v_add_u32 v{rE}, -8, v{rH}
    s_lshl_b32 s34, s25, 13
    s_lshl_b32 s35, s24, 18
    s_add_u32 s34, s34, s35
    s_add_u32 s35, s34, 4096
    s_mov_b64 s[36:37], s[12:13]
    s_mov_b32 s38, 0x200000
    s_mov_b32 s39, 0x20000
    s_lshl_b32 s42, s24, {GSH}
    s_lshl_b32 s43, s25, {LSB+6}
    s_add_u32 s42, s42, s43
    v_lshrrev_b32 v{rP}, 2, v0
    v_lshl_add_u32 v{rP}, v{rP}, {LSB}, s42
    {XSEL}
    s_mov_b64 s[52:53], {XBASE}
    s_lshl_b32 s42, s26, 19
    s_lshl_b32 s43, s56, 11
    s_add_u32 s42, s42, s43
    """)
    a(f"""
    s_lshl_b32 s43, s57, 7
    s_add_u32 s42, s42, s43
    s_add_u32 s42, s42, {Z1W}
    v_lshl_add_u32 v{rZS}, v6, 2, s42
    """ if cfg.z32 else f"""
    s_and_b32 s43, s57, 3
    s_lshl_b32 s43, s43, 8
    s_add_u32 s42, s42, s43
    s_lshr_b32 s43, s57, 2
    s_lshl_b32 s43, s43, 6
    s_add_u32 s42, s42, s43
    s_add_u32 s42, s42, {Z1W}
    v_lshl_add_u32 v{rZS}, v1, 2, s42
    v_and_b32 v10, 1, v9
    v_lshl_add_u32 v{rZS}, v10, 10, v{rZS}
    """)
    a(f"""
    v_lshl_add_u32 v{rZS}, v5, 16, v{rZS}
    s_lshr_b32 s48, s25, 2
    s_lshl3_add_u32 s48, s24, s48
    s_and_b32 s49, s25, 3
    """)
    def addrs():
        a(gather_addr(rCL, 13))
        a(f"""
        s_lshl_b32 s40, s24, 12
        s_add_u32 s40, s40, {CF}
        s_add_u32 s46, s22, s40
        s_addc_u32 s47, s23, 0
        s_lshl_b32 s42, s26, 7
        s_lshl2_add_u32 s42, s25, s42
        v_mov_b32 v{rFS}, s42
        v_lshlrev_b32 v{rLZ}, 3, v0
        v_and_b32 v13, 7, v0
        s_xor_b32 s42, s24, {cfg.xs}
        s_lshl3_add_u32 s42, s25, s42
        s_lshl_b32 s42, s42, {cfg.zfs}
        s_add_u32 s42, s42, {ZF}
        v_lshl_add_u32 v{rGZ}, v13, {8+cfg.zfs}, s42
        s_lshl_b32 s42, s24, 5
        s_add_u32 s42, s42, s25
        {"" if cfg.xrot else "s_lshl2_add_u32 s42, s42, s26"}
        s_lshl_b32 s42, s42, {cfg.zfs+(3 if cfg.xrot else 1)}
        s_add_u32 s42, s42, {ZF}
        s_add_u32 s54, s22, s42
        s_addc_u32 s55, s23, 0
        s_lshl_b32 s42, s25, 16
        s_lshl_b32 s43, s24, 7
        s_add_u32 s42, s42, s43
        v_lshl_add_u32 v{rQ}, v13, 4, s42
        {f"v_and_b32 v13, 3, v0" if not cfg.gate else ""}
        v_lshlrev_b32 v13, 2, v13
        v_add_u32 v{rZF}, {FL+48}, v13
        v_bfe_u32 v13, v0, 3, 3
        v_lshl_add_u32 v{rQ}, v13, 10, v{rQ}
        v_mov_b32 v{rSE}, {SENT}
        v_mov_b32 v{rSE+1}, v{rSE}
        v_mov_b64 v[{rSE+2}:{rSE+3}], v[{rSE}:{rSE+1}]
        s_lshl2_add_u32 s42, s26, {FL}
        v_mov_b32 v{rLF}, s42
        v_mov_b32 v{rONE}, 1
        v_mov_b32 v{rMD}, {FL+80}
        s_lshl2_add_u32 s42, s48, s26
        s_lshl_b32 s42, s42, 13
        s_add_u32 s42, s42, {Z1W+4096}
        {"v_lshl_add_u32 v13, v5, 7, v6" if cfg.z32 else "v_and_b32 v13, 63, v0"}
        v_lshl_add_u32 v{rZA}, v13, 2, s42
        s_lshl_b32 s42, s26, 9
        s_add_u32 s42, s42, {ZL}
        v_lshl_add_u32 v{rZW}, {LO}, 4, s42
        v_lshl_add_u32 v{rZW}, {HI}, 12, v{rZW}
        s_lshl_b32 s42, s26, 12
        s_add_u32 s42, s42, {ZL}
        v_lshl_add_u32 v{rZR}, v1, 4, s42
        v_lshl_add_u32 v{rZR}, v9, 9, v{rZR}
        s_lshl2_add_u32 s42, s49, s26
        s_lshl_b32 s42, s42, 7
        s_add_u32 s42, s42, s48
        s_sub_u32 s43, 2048, s42
        s_add_u32 s41, s42, 64
        s_cmp_eq_u32 s48, 0
        s_cselect_b32 s43, s41, s43
        s_lshl_b32 s42, s42, 11
        s_lshl_b32 s43, s43, 11
        v_lshlrev_b32 v13, 5, v1
        v_lshl_add_u32 v13, v9, 3, v13
        v_add_u32 v{rO}, s42, v13
        v_add_u32 v{rO+1}, s43, v13
        s_mov_b32 s33, 0
        """)
    st = {}
    def hloads():
        vm.issue(f"buffer_load_dwordx4 {vr(HD,4)}, v{rH}, s[36:39], s34 offen")
        vm.issue(f"buffer_load_dwordx4 {vr(HD+4,4)}, v{rH}, s[36:39], s35 offen")
        a("s_mov_b64 exec, 1")
        vm.issue(f"buffer_load_dwordx2 {vr(HE,2)}, v{rE}, s[36:39], s34 offen")
        st["h"] = vm.issue(f"buffer_load_dwordx2 {vr(HE+2,2)}, v{rE}, s[36:39], s35 offen")
        a("s_mov_b64 exec, -1")
        if cfg.ppos == 1: vm.issue(f"global_load_dword v254, v{rP}, s[52:53] nt")
        stamp(11)
    if cfg.hpos == 4: hloads()
    if cfg.addr_at == 0: addrs()
    if cfg.hpos == 3: hloads()
    a("s_waitcnt lgkmcnt(0)")
    stamp(2)
    a("s_barrier")
    lg = Lgkm(a)
    tk = []
    for ks in range(8):
        lg.issue(f"ds_read_b64_tr_b16 {vr(BD+4*ks,2)}, v3 offset:{1024*ks}")
        tk.append(lg.issue(f"ds_read_b64_tr_b16 {vr(BD+4*ks+2,2)}, v3 offset:{1024*ks+256}"))
    if cfg.hpos == 0: hloads()
    if cfg.ppos == 5: vm.issue(f"global_load_dword v254, v{rP}, s[52:53] nt")
    for ks in range(8):
        lg.wait(tk[ks])
        a(f"v_mfma_f32_32x32x16_bf16 {vr(A1,16)}, {vr(C1+4*ks,4)}, {vr(BD+4*ks,4)}, {vr(A1,16) if ks else 0}")
        if ks < 4:
            for i in range(4): a(f"v_xor_b32 v{C1+16+4*ks+i}, v{C1+4*ks+i}, v8")
    if cfg.hpos == 1: hloads()
    a(f"""
    {TAG}
    {XCC}
    s_xor_b32 s29, s27, s28
    s_mov_b32 s30, s27
    s_mov_b32 s31, s27
    v_mov_b32 v{rFV}, s29
    v_mov_b32 v{rGV}, s27
    s_lshl_b32 s42, s49, 2
    v_add_lshl_u32 v7, v7, s42, 1
    v_bfe_u32 v10, v0, 1, 1
    v_and_b32 v12, v10, v4
    """)
    for j in range(4):
        for b in range(2):
            a(f"v_cvt_pk_bf16_f32 v{BD+2*j+b}, v{A1+4*j+2*b}, v{A1+4*j+2*b+1}")
            tZ = vm.issue(f"global_store_dword v{rZS}, v{BD+2*j+b}, s[22:23] sc1")
            if not (j == 3 and b == 1):
                a(f"v_add_u32 v{rZS}, {0x8000 if b == 0 else 0x18000}, v{rZS}")
    if cfg.hpos == 2: hloads()
    if cfg.ppos == 2: vm.issue(f"global_load_dword v254, v{rP}, s[52:53] nt")
    stamp(3)
    a(f"""
    v_lshlrev_b32 v12, 4, v12
    v_mov_b32 v13, -1
    s_cmp_lg_u32 s48, 0
    s_cbranch_scc1 L_generic
    v_add_u32 v7, v7, v10
    v_lshlrev_b32 v12, 3, v10
    v_lshlrev_b32 v13, 4, v10
    v_mov_b32 v14, 0xffff
    v_lshlrev_b32 v13, v13, v14
    L_generic:
    v_lshl_add_u32 v12, v4, 3, v12
    v_lshlrev_b32 v10, 2, {HI}
    v_mad_u32_u24 v12, v10, v7, v12
    v_lshlrev_b32 v10, 2, v9
    v_cvt_f32_u32 v12, v12
    v_cvt_f32_u32 v7, v7
    v_mul_f32 v12, {f32(1/32)}, v12
    v_mul_f32 v7, {f32(1/32)}, v7
    """)
    for i in range(8 if cfg.z32 else 4):
        a(f"v_cos_f32 v100, v12\nv_sin_f32 v101, v12")
        if i % 4 < 3: a("v_add_f32 v12, v12, v7")
        elif i == 3 and cfg.z32: a(f"v_fmamk_f32 v12, v7, {f32(5.0)}, v12")
        a(f"v_cvt_pk_bf16_f32 v100, v100, v101\nv_and_b32 v{C0+i}, v100, v13")
    a(f"""
    v_mul_u32_u24 v14, 0x8000, v4
    v_lshl_or_b32 v14, v14, 16, v14
    v_mul_u32_u24 v10, v10, v1
    v_cvt_f32_u32 v10, v10
    v_cvt_f32_u32 v11, v1
    """)
    def cs1():
        a(f"v_mul_f32 v12, {f32(1/16)}, v10\nv_mul_f32 v13, {f32(1/16)}, v11")
        for i in range(4):
            a(f"v_cos_f32 v100, v12\nv_sin_f32 v101, v12")
            if i < 3: a("v_add_f32 v12, v12, v13")
            a(f"v_cvt_pk_bf16_f32 v{CS1+i}, v100, v101\nv_cvt_pk_bf16_f32 v{CS1+4+i}, -v101, v100")
    def tw():
        a(f"v_mul_f32 v12, {f32(1/512)}, v10\nv_mul_f32 v13, {f32(1/512)}, v11")
        for mt in range(2):
            for r in range(4):
                a(f"v_cos_f32 v{TWC+4*mt+r}, v12\nv_sin_f32 v{TWS+4*mt+r}, v12")
                if r < 3: a("v_add_f32 v12, v12, v13")
                elif mt == 0: a(f"v_fmamk_f32 v12, v13, {f32(13.0)}, v12")
    def cs2():
        a(f"v_mul_f32 v12, {f32(1/32)}, v10\nv_mul_f32 v13, {f32(1/32)}, v11")
        for r in range(4):
            a(f"v_cos_f32 v{100+r}, v12\nv_sin_f32 v{104+r}, v12")
            if r < 3: a("v_add_f32 v12, v12, v13")
        for i in range(4): a(f"v_cvt_pk_bf16_f32 v{CS2+i}, v{100+2*i}, v{101+2*i}")
        for i in range(4): a(f"v_xor_b32 v{CS2+4+i}, v{CS2+i}, v14")
        for i in range(8): a(f"v_xor_b32 v{CS2+8+i}, 0x80000000, v{CS2+i}")
    chunks = [cs1, tw, cs2]
    if cfg.addr_at == 1: addrs()
    for f in chunks[:cfg.npre]: f()
    def lzflag():
        a("s_mov_b64 exec, 1")
        vm.wait(tZ)
        vm.issue(f"global_store_dword v{rFS}, v{rFV}, s[46:47] offset:{CF_Z}")
        a("s_mov_b64 exec, -1")
        stamp(12)
    if cfg.lzpos == 3: lzflag()
    vm.wait(st["h"])
    stamp(4)
    if cfg.lzpos == 1: lzflag()
    for ch in range(2):
        d, e = HD + 4*ch, HE + 2*ch
        w = [e, e+1, d, d+1, d+2, d+3]
        t = T + 12*ch
        o = HC + 32 + ch*HCH
        a(f"ds_write_b128 v{rH}, {vr(d,4)} offset:{o}")
        for i in range(2): a(f"v_mov_b32_dpp v{e+i}, v{d+2+i} wave_shr:1 row_mask:0xf bank_mask:0xf")
        for i in range(4): a(f"v_alignbyte_b32 v{t+i}, v{w[i+2]}, v{w[i+1]}, 2")
        a(f"ds_write_b128 v{rH}, {vr(t,4)} offset:{o+HCS}")
        for i in range(4): a(f"v_mov_b32 v{t+4+i}, v{w[i+1]}")
        a(f"ds_write_b128 v{rH}, {vr(t+4,4)} offset:{o+2*HCS}")
        for i in range(4): a(f"v_alignbyte_b32 v{t+8+i}, v{w[i+1]}, v{w[i]}, 2")
        a(f"ds_write_b128 v{rH}, {vr(t+8,4)} offset:{o+3*HCS}")
    if cfg.lzpos == 2: lzflag()
    a("s_waitcnt lgkmcnt(0)")
    stamp(5)
    a("s_barrier")
    if cfg.lzpos == 0: lzflag()
    a(f"ds_read_b32 v{rMD}, v{rMD}")
    for f in chunks[cfg.npre:cfg.npre+cfg.nmid]: f()
    if cfg.aux_prio: a(f"s_setprio {cfg.aux_prio}")
    a(f"""
    s_waitcnt lgkmcnt(0)
    v_cmp_ne_u32 vcc, 0, v{rMD}
    s_cbranch_vccnz L_auxslow
    """)
    NZ = 8 if cfg.xrot else 2
    if cfg.zfs == 2: ZP_ = f"s_load_dwordx{NZ} s[8:{7+NZ}], s[54:55], 0 glc\n"
    else: ZP_ = "".join(f"s_load_dword s{8+i}, s[54:55], {i << cfg.zfs} glc\n" for i in range(NZ))
    ZC_ = "".join(f"s_cmp_eq_u64 s[{8+2*i}:{9+2*i}], s[30:31]\n" + ("s_cbranch_scc0 L_znot\n" if i < NZ//2 - 1 else "s_cbranch_scc1 L_zok\nL_znot:\n") for i in range(NZ//2))
    def side(fl, off, tg):
        q = ""
        for n in range(8):
            q += f"s_mov_b32 m0, {XT+1024*n}\n" + (f"v_add_u32 v{rQ}, 8192, v{rQ}\n" if n else "s_nop 0\n") + f"global_load_lds_dwordx4 v{rQ}, s[4:5]\n"
        LZ = f"global_load_dwordx2 {vr(rLP,2)}, v{rLZ}, s[46:47] offset:{off+CF_Z} sc1"
        CL = f"""
        global_store_dwordx4 v{rCL}, {vr(rSE,4)}, s[52:53] {fl}
        global_store_dwordx4 v{rCL+1}, {vr(rSE,4)}, s[52:53] {fl}
        """
        return f"""
        s_cmp_lg_u32 s26, 0
        s_cbranch_scc1 L_nolead{tg}
        {LZ}
        s_barrier
        {CL}
        s_waitcnt vmcnt(2)
        L_lzpoll{tg}:
        v_cmp_ne_u32 vcc, s29, v{rLP}
        v_cmp_ne_u32 s[40:41], s29, v{rLP+1}
        s_or_b64 vcc, vcc, s[40:41]
        s_cbranch_scc0 L_lzok{tg}
        {LZ}
        {BOUND}
        s_waitcnt vmcnt(0)
        s_branch L_lzpoll{tg}
        L_lzok{tg}:
        s_mov_b64 exec, 0xff
        global_store_dword v{rGZ}, v{rGV}, s[22:23] sc1
        s_mov_b64 exec, -1
        {"s_memrealtime s[72:73]" if cfg.stamps else ""}
        {"" if cfg.noq else q}
        s_waitcnt vmcnt({1 if cfg.noq else 9})
        s_branch L_cleared{tg}
        L_nolead{tg}:
        s_barrier
        {CL}
        s_waitcnt vmcnt(0)
        L_cleared{tg}:
        {ZP_}
        ds_write_b32 v{rLF}, v{rONE} offset:16
        s_mov_b64 exec, 1
        global_store_dword v{rFS}, v{rFV}, s[46:47] offset:{off+CF_Y} {fl}
        s_mov_b64 exec, -1
        """
    stamp(6)
    a(side("", 0, "f"))
    a("L_auxjoin:")
    slow_stubs.append(f"""
    L_auxslow:
    s_mov_b32 s29, s27
    v_mov_b32 v{rFV}, s27
    s_add_u32 s52, s22, {KVS}
    s_addc_u32 s53, s23, 0
    s_mov_b64 exec, 1
    global_store_dword v{rFS}, v{rFV}, s[46:47] offset:{CF_SLOW+CF_Z} sc1
    s_mov_b64 exec, -1
    {side("sc1", CF_SLOW, "s")}
    s_branch L_auxjoin
    """)
    stamp(13)
    for f in chunks[cfg.npre+cfg.nmid:]: f()
    QF_ = f"ds_write_b32 v{rLF}, v{rONE} offset:32"
    a(f"""
    {"s_waitcnt vmcnt(0)" if cfg.nofnet2 else ""}
    {QF_ if cfg.nofnet2 else ""}
    {"s_endpgm" if cfg.nofnet2 else ""}
    L_zpoll:
    s_waitcnt lgkmcnt(0)
    {ZC_}
    {ZP_}
    {BOUND}
    s_add_u32 s33, s33, 1
    s_cmp_lt_u32 s33, 3
    s_cbranch_scc1 L_zpoll
    s_waitcnt vmcnt(0)
    {QF_}
    s_branch L_zpoll
    L_zok:
    """)
    stamp(7)
    ZD, A0, ZP = 48, 128, 80
    for dl in range(4):
        for hf in range(2):
            for i in range(4):
                a(f"global_load_dword v{ZD+8*dl+4*hf+i}, v{rZA}, s[22:23] offset:{2048*dl+1024*hf+(128 if cfg.z32 else 256)*i-4096} {cfg.zld}")
    a(f"s_waitcnt vmcnt(32)\n{QF_}")
    if cfg.aux_prio and cfg.aux_drop: a("s_setprio 0")
    stamp(14)
    def cv(dl, hf):
        for b in range(2):
            r = A0 + (16 if cfg.z32 else 8)*dl + 4*hf + 2*b
            a(f"v_cvt_pk_bf16_f32 v{ZP+4*(2*hf+b)+dl}, v{r}, v{r+1}")
    for dl in range(4):
        for hf in range(2):
            a(f"s_waitcnt vmcnt({32-8*dl-4*hf-4})")
            if cfg.z32:
                d = vr(A0+16*dl, 16)
                a(f"v_mfma_f32_32x32x16_bf16 {d}, {vr(C0+4*hf,4)}, {vr(ZD+8*dl+4*hf,4)}, {d if hf else 0}")
            else:
                a(f"v_mfma_f32_16x16x32_bf16 {vr(A0+8*dl+4*hf,4)}, {vr(C0,4)}, {vr(ZD+8*dl+4*hf,4)}, 0")
    stamp(8)
    for dl in range(4):
        for hf in range(2): cv(dl, hf)
    for hf in range(2):
        for b in range(2):
            a(f"ds_write_b128 v{rZW}, {vr(ZP+4*(2*hf+b),4)} offset:{2048*b+(8192 if cfg.z32 else 256)*hf}")
    ZA, G = 48, 128
    a(f"ds_write_b32 v{rLF}, v{rONE} offset:48\ns_or_b32 s42, s2, s26\nL_zl:\nds_read_b32 v8, v{rZF}")
    for row in range(2):
        for mt in range(2):
            a(f"ds_read_b128 {vr(ZA+8*row+4*mt,4)}, v{rZR} offset:{2048*row+256*mt}")
    a(f"""
    s_waitcnt lgkmcnt(4)
    v_cmp_ne_u32 vcc, 1, v8
    s_cbranch_vccz L_zlok
    {BOUND}
    s_waitcnt lgkmcnt(0)
    {f"s_sleep {cfg.zlsleep}" if cfg.zlsleep else ""}
    s_branch L_zl
    L_zlok:
    """)
    stamp(9)
    n = 0
    for row in range(2):
        for mt in range(2):
            n += 1
            a(f"s_waitcnt lgkmcnt({4-n})")
            for c in range(2):
                a(f"v_mfma_f32_16x16x32_bf16 {vr(G+16*row+8*mt+4*c,4)}, {vr(ZA+8*row+4*mt,4)}, {vr(CS1+4*c,4)}, 0")
    GP, TM, YO = 64, 96, 160
    def fin(row):
        for nt in range(2):
            y = YO+8*row+4*nt
            a(f"v_cvt_pk_bf16_f32 v{y}, v{y}, v{y+1}\nv_cvt_pk_bf16_f32 v{y+1}, v{y+2}, v{y+3}")
            a(f"global_store_dwordx2 v{rO+row}, {vr(y,2)}, s[20:21] offset:{1024+512*nt} {cfg.fout_flag}")
    for row in range(2):
        for mt in range(2):
            re, im = G+16*row+8*mt, G+16*row+8*mt+4
            for h in range(2):
                tc = vr(TWC+4*mt+2*h, 2)
                a(f"v_pk_mul_f32 {vr(TM+4*h,2)}, {vr(re+2*h,2)}, {tc}")
                a(f"v_pk_mul_f32 {vr(TM+4*h+2,2)}, {vr(im+2*h,2)}, {tc}")
            for h in range(2):
                ts = vr(TWS+4*mt+2*h, 2)
                a(f"v_pk_fma_f32 {vr(TM+4*h,2)}, {vr(im+2*h,2)}, {ts}, {vr(TM+4*h,2)}")
                a(f"v_pk_fma_f32 {vr(TM+4*h+2,2)}, {vr(re+2*h,2)}, {ts}, {vr(TM+4*h+2,2)} neg_lo:[1,0,0] neg_hi:[1,0,0]")
            p = GP + 8*row + 4*mt
            for h in range(2):
                a(f"v_cvt_pk_bf16_f32 v{p+h}, v{TM+4*h}, v{TM+4*h+1}")
                a(f"v_cvt_pk_bf16_f32 v{p+2+h}, v{TM+4*h+2}, v{TM+4*h+3}")
            if (row, mt) == (1, 0): fin(0)
            for nt in range(2):
                d = vr(YO+8*row+4*nt, 4)
                a(f"v_mfma_f32_16x16x32_bf16 {d}, {vr(p,4)}, {vr(CS2+8*nt+4*mt,4)}, {d if mt else 0}")
    a(f"""
    s_cmp_lg_u32 s42, 0
    s_cbranch_scc1 L_noepoch
    v_mov_b32 v7, 0
    s_mov_b64 exec, 1
    global_store_dword v7, v{rGV}, s[44:45]
    s_mov_b64 exec, -1
    L_noepoch:
    s_nop 5
    """)
    fin(1)
    stamp_out(10)
    a("L_exit:\ns_endpgm")
    a(f"""
    L_kvretry:
    global_load_dword v34, v11, s[46:47] offset:{CF_KV} sc1
    s_add_u32 s52, s52, 1
    s_waitcnt vmcnt(0)
    v_cmp_ne_u32 vcc, s29, v34
    s_cbranch_vccz L_kvdone
    s_cmp_gt_u32 s52, {cfg.timeout}
    s_cbranch_scc0 L_kvretry
    s_branch L_kvcheck
    L_kvdone:
    s_cmp_lg_u32 s49, 0
    s_cbranch_scc1 L_kvokB
    s_branch L_kvokA
    L_kvcheck:
    {BOUND}
    s_xor_b32 s55, s27, 0x5bd1e995
    v_mov_b32 v36, s55
    v_mov_b32 v37, s29
    s_lshl_b32 s40, s25, 3
    v_mov_b32 v38, s40
    s_mov_b64 exec, 1
    global_store_dwordx2 v38, v[36:37], s[46:47] offset:{CF_HELLO} sc1
    s_mov_b64 exec, -1
    v_lshlrev_b32 v38, 1, v11
    global_load_dwordx2 v[36:37], v38, s[46:47] offset:{CF_HELLO} sc1
    s_waitcnt vmcnt(0)
    v_cmp_eq_u32 s[56:57], s55, v36
    v_cmp_ne_u32 vcc, s29, v37
    s_and_b64 s[56:57], s[56:57], vcc
    v_xor_b32 v37, s27, v37
    v_cmp_gt_u32 vcc, 16, v37
    s_and_b64 s[56:57], s[56:57], vcc
    s_cbranch_scc1 L_goslow
    s_sleep 8
    s_branch L_kvretry
    L_goslow:
    s_mov_b32 s53, 1
    s_mov_b32 s29, s27
    v_mov_b32 v33, s27
    v_mov_b32 v36, {FL+80}
    ds_write_b32 v36, v35
    s_add_u32 s36, s22, {KVS}
    s_addc_u32 s37, s23, 0
    s_add_u32 s38, s22, {DUMMY}
    s_addc_u32 s39, s23, 0
    global_store_dwordx4 v9, {vr(KVP,4)}, s[36:37] sc1
    global_store_dwordx4 v29, {vr(KVP+4,4)}, s[36:37] sc1
    s_lshl2_add_u32 s40, s25, s26
    s_lshl_b32 s40, s40, 2
    v_mov_b32 v36, s40
    v_lshlrev_b32 v37, 3, v2
    s_waitcnt vmcnt(0) lgkmcnt(0)
    s_mov_b64 exec, 1
    global_store_dword v36, v33, s[46:47] offset:{CF_SLOW+CF_KV} sc1
    s_mov_b64 exec, -1
    L_kvslowpoll:
    global_load_dwordx2 v[38:39], v37, s[46:47] offset:{CF_SLOW+CF_KV} sc1
    s_waitcnt vmcnt(0)
    v_cmp_ne_u32 vcc, s29, v38
    v_cmp_ne_u32 s[56:57], s29, v39
    s_or_b64 vcc, vcc, s[56:57]
    s_cbranch_scc0 L_kvdone
    {BOUND}
    s_sleep 8
    s_branch L_kvslowpoll
    """)
    for s in slow_stubs: a(s)
    a('L_code_end:')
    hdr = open("concat_heads__ssm_conv_h3__spectral_fnet__prompt.s.ref").read().split("; Override")[0]
    txt = hdr + f"; @launch grid=(256,1,1) block=(512,1,1) lds={LDS_BYTES}\n"
    txt += f""".amdgcn_target "amdgcn-amd-amdhsa--gfx950"
.text
.globl {KN}
.p2align 8
.type {KN},@function
{KN}:
""" + a.text() + f""".section .rodata,"a"
.p2align 6
.amdhsa_kernel {KN}
  .amdhsa_next_free_vgpr 256
  .amdhsa_next_free_sgpr 100
  .amdhsa_accum_offset 256
  .amdhsa_group_segment_fixed_size 0
  .amdhsa_kernarg_size 112
  .amdhsa_user_sgpr_count 2
  .amdhsa_user_sgpr_kernarg_segment_ptr 1
  .amdhsa_system_sgpr_workgroup_id_x 1
  .amdhsa_float_denorm_mode_32 3
.end_amdhsa_kernel
"""
    return txt, a

if __name__ == "__main__":
    cfg = Cfg()
    out = sys.argv[1]
    for kv in sys.argv[2:]:
        k, v = kv.split("=")
        cur = getattr(cfg, k)
        setattr(cfg, k, (v == "1") if isinstance(cur, bool) else type(cur)(v))
    txt, a = gen(cfg)
    bad = check_inflight(a)
    for b in bad: print("INFLIGHT:", b)
    assert not bad
    open(out, "w").write(txt)
    print("instructions:", sum(1 for i in a.ins if not (i.label or i.directive)), "pad states:", a.pads)
```

```python
import sys, struct
from asmlib import *

KN = "concat_heads__ssm_conv_h3__spectral_fnet__prompt_kernel"
def f32(x): return "0x%08x" % struct.unpack("<I", struct.pack("<f", x))[0]

class Cfg:
    stamps = False
    cyc = False
    probe = ''
    zfs = 7
    timeout = 64
    force_slow = False
    out_flag = "nt"
    xflag = ""
    conv_prio = 0
    fnet_prio = 0
    pf = 5
    xdiag = 0
    kfirst = 0
    bi = 0
    hack = ''
    lead2 = 1
    zlite = 1
    gzr = 4
    zx4 = 1
    solo = 0
    yhalf = 1
    wfirst = 1
    zdef = 0
    gpos = 0
    gdel = 0
    apre = 64
    aper = 1
    z32 = 1
    gperm = 0
    noq = 0
    layout = 1
    epad = 0
    npb = 2
    b0pos = 1
    b0at = 8
    xout = 2
    fout_flag = 'nt'
    pollpos = 2
    nrep = 4
    repsleep = 0
    spoll = 3
    xs = 1
    xrot = 0
    align = 0
    zld = 'sc1'
    poll_at = 112
    zgate = 2
    touch = 0
    fpre = 0
    addr_at = 0
    npre = 2
    cpf = 2
    lead = 9
    px_at = 90
    nos = 0
    gxor = 0
    nmid = 1
    hpos = 0
    aux_prio = 1
    aux_drop = 2
    gate = 128
    zlsleep = 0
    lzpos = 0
    pflag = 'nt'
    qpos = 0
    sflag = ''
    ppos = 0
    zearly = 0
    nofnet2 = False

KVF = 0x000000
ZF = 0x200000
CF = 0x240000
FE = 0x250000
Z1W = 0x280000
SPARE = 0x480000
KVS = 0x600000
DUMMY = 0xa00000
ALT = 0xe00000
CF_KV, CF_Z, CF_Y = 0, 512, 1024
CF_SLOW = 1536
CF_HELLO = 3072
STAMP = 0x4000000
HC, HCS, HCH = 0, 4160, 16640
XI, XIS = 33280, 4672
PX = XI + 2*XIS
XT = PX + 16384
ZL = XT + 8192
FL = ZL + 18432
LDS_BYTES = FL + 128
S0, S1 = (0, 3, 4, 7), (1, 2, 5, 6)
SENT = 0x7f817f81
BOUND = "s_add_u32 s58, s58, 1\ns_cmp_gt_u32 s58, 0x40000\ns_cbranch_scc1 L_exit\n"
TAG = "s_mul_i32 s27, s27, 0x9e3779b1\ns_add_u32 s27, s27, 0x7f4a7c15\n"

def gen(cfg):
    a = Asm()
    role = ['c']
    uid = [0]
    extra = set()
    def stamp(i):
        extra.add((role[0], i))
        if cfg.stamps or (cfg.probe and (i == 0 or cfg.probe == role[0] + str(i))):
            a(f"{'s_memtime' if cfg.cyc else 's_memrealtime'} s[{60+2*i}:{61+2*i}]")
    def stamp_out(n):
        uid[0] += 1
        if cfg.probe and cfg.probe[0] == 's':
            sel = cfg.probe[1:]
            a(f"""
            s_waitcnt vmcnt(0) lgkmcnt(0)
            s_lshl_b32 s40, s2, 7
            s_add_u32 s40, s40, 0x1300000
            v_mov_b32 v1, s40
            v_mov_b32 v2, s60
            global_store_dword v1, v2, s[22:23] sc1
            s_waitcnt vmcnt(0)
            s_cmp_lg_u32 s2, 0
            s_cbranch_scc1 L_exit
            L_pa_{uid[0]}:
            s_sleep 1
            s_memrealtime s[42:43]
            s_waitcnt lgkmcnt(0)
            s_sub_u32 s41, s42, s60
            s_cmp_lt_u32 s41, 1200
            s_cbranch_scc1 L_pa_{uid[0]}
            s_add_u32 s44, s22, 0x1300000
            s_addc_u32 s45, s23, 0
            """)
            for x in range(8): a(f"s_load_dword s{4+x}, s[44:45], {128*x} glc")
            a("s_waitcnt lgkmcnt(0)\ns_mov_b32 s12, s4\ns_mov_b32 s13, s4")
            for x in range(1, 8): a(f"s_min_u32 s12, s12, s{4+x}\ns_max_u32 s13, s13, s{4+x}")
            a(f"""
            s_sub_u32 s40, {'s13' if sel == 'max' else 's12' if sel == 'z' else 's' + str(4 + int(sel))}, s12
            s_min_u32 s40, s40, 1000
            s_lshl_b32 s40, s40, 3
            s_add_u32 s40, s40, 2000
            L_probe_{uid[0]}:
            s_sleep 1
            s_memrealtime s[42:43]
            s_waitcnt lgkmcnt(0)
            s_sub_u32 s41, s42, s12
            s_cmp_lt_u32 s41, s40
            s_cbranch_scc1 L_probe_{uid[0]}
            """)
            return
        if cfg.probe:
            i = int(cfg.probe[1:]) if cfg.probe[0] == role[0] else 0
            a("s_waitcnt vmcnt(0)")
            stamp(n)
            a(f"""
            s_waitcnt lgkmcnt(0)
            s_sub_u32 s40, s{60+2*i}, s60
            s_lshl_b32 s40, s40, 2
            s_add_u32 s40, s40, 2000
            L_probe_{uid[0]}:
            s_sleep 1
            s_memrealtime s[42:43]
            s_waitcnt lgkmcnt(0)
            s_sub_u32 s41, s42, s60
            s_cmp_lt_u32 s41, s40
            s_cbranch_scc1 L_probe_{uid[0]}
            """)
            return
        if not cfg.stamps: return
        a("s_waitcnt vmcnt(0)")
        stamp(n)
        a("s_waitcnt lgkmcnt(0)")
        for i in range(16):
            a(f"v_mov_b32 v{40+i}, s{60+2*i}" if (role[0], i) in extra else f"v_mov_b32 v{40+i}, s60")
        a(f"""
        s_lshl_b32 s40, s2, 2
        s_add_u32 s40, s40, s26
        s_lshl_b32 s40, s40, 6
        s_add_u32 s40, s40, {STAMP + (0 if role[0] == 'c' else 256*4*64)}
        v_mov_b32 v1, s40
        s_mov_b64 exec, 1
        global_store_dwordx4 v1, v[40:43], s[22:23]
        global_store_dwordx4 v1, v[44:47], s[22:23] offset:16
        global_store_dwordx4 v1, v[48:51], s[22:23] offset:32
        global_store_dwordx4 v1, v[52:55], s[22:23] offset:48
        """)
    def unp(dst, src): a(f"v_lshlrev_b32 v{dst}, 16, v{src}\nv_and_b32 v{dst+1}, 0xffff0000, v{src}")
    XCC = "s_and_b32 s28, s25, 1" if cfg.force_slow else "s_getreg_b32 s28, hwreg(HW_REG_XCC_ID, 0, 4)"
    LSB = 11 if cfg.xout else 7
    GSH = 7 if cfg.xout else 18
    XBASE = "s[18:19]" if cfg.xout == 2 else "s[20:21]" if cfg.xout else "s[22:23]"
    XSEL = f"""
    s_add_u32 s18, s22, {ALT-128}
    s_addc_u32 s19, s23, 0
    s_cmp_eq_u32 s24, 3
    s_cselect_b64 s[18:19], s[18:19], s[20:21]
    """ if cfg.xout == 2 else ""
    def gather_addr(va, tmp):
        return f"""
        s_lshl_b32 s40, s24, {GSH}
        s_lshr_b32 s41, s25, 1
        s_lshl_b32 s41, s41, {LSB}
        s_add_u32 s51, s40, s41
        s_and_b32 s41, s25, 1
        s_lshl_b32 s41, s41, 6
        s_add_u32 s51, s51, s41
        s_lshl_b32 s41, s26, {LSB+9}
        s_add_u32 s41, s41, s51
        v_and_b32 v{tmp}, 3, v0
        v_lshl_add_u32 v{tmp}, v{tmp}, 4, s41
        v_bfe_u32 v{va}, v0, 2, 4
        v_lshl_add_u32 v{va}, v{va}, {LSB+4}, v{tmp}
        v_add_u32 v{va+1}, {256 << LSB}, v{va}
        """
    K0, V0, W0 = 128, 140, 148
    KVP, DD = 16, 32
    ACC, BR, NB, AF = 36, 68, 12, 128
    YA = 120
    vm = Vm(a)
    if cfg.align:
        a(f"""
        s_memrealtime s[4:5]
        s_and_b32 s7, s2, 7
        s_mul_i32 s7, s7, {cfg.align-1}
        s_waitcnt lgkmcnt(0)
        s_add_u32 s6, s4, 0x1100
        s_and_b32 s6, s6, 0xfffff000
        s_add_u32 s6, s6, s7
        L_align:
        s_memrealtime s[4:5]
        s_waitcnt lgkmcnt(0)
        s_sub_u32 s4, s4, s6
        s_cmp_lt_i32 s4, 0
        s_cbranch_scc1 L_align
        s_branch L_start
        .p2align 12
        L_start:
        """)
    stamp(0)
    a(f"""
    s_load_dwordx16 s[4:19], s[0:1], 0
    s_load_dwordx2 s[22:23], s[0:1], 104
    s_load_dwordx2 s[20:21], s[0:1], 88
    s_cmp_ge_u32 s2, 256
    s_cbranch_scc1 L_exit
    v_lshrrev_b32 v2, 6, v0
    v_and_b32 v1, 15, v0
    v_readfirstlane_b32 s26, v2
    s_and_b32 s24, s2, 7
    {f"s_xor_b32 s24, s24, {cfg.gxor}" if cfg.gxor else ""}
    {"s_lshl_b32 s24, s24, 2" if cfg.gperm else ""}
    {"s_lshr_b32 s24, 0x65421073, s24" if cfg.gperm else ""}
    {"s_and_b32 s24, s24, 7" if cfg.gperm else ""}
    s_lshr_b32 s25, s2, 3
    s_cmp_ge_u32 s26, 4
    s_cbranch_scc1 L_fnet
    s_getpc_b64 s[30:31]
    L_pc:
    s_lshl_b32 s40, s25, 10
    v_lshrrev_b32 v3, 5, v0
    v_lshl_add_u32 v4, v3, 7, s40
    v_min_u32 v4, L_code_end-L_pc-4, v4
    """)
    vm.issue("global_load_dword v255, v4, s[30:31]")
    a(f"""
    s_lshr_b32 s43, s25, 1
    {"s_add_u32 s41, s24, s43" if cfg.xrot else f"s_xor_b32 s41, s24, {cfg.xs}"}
    s_and_b32 s41, s41, 7
    s_lshl3_add_u32 s41, s43, s41
    s_and_b32 s42, s25, 1
    s_lshl1_add_u32 s42, s41, s42
    s_lshl_b32 s42, s42, 6
    s_lshl_b32 s41, s24, 7
    v_bfe_u32 v9, v0, 2, 4
    v_lshl_add_u32 v9, v2, 5, v9
    v_and_b32 v15, 3, v0
    v_lshl_add_u32 v10, v15, 4, s42
    v_lshl_add_u32 v9, v9, 14, v10
    v_add_u32 v10, 0x40000, v9
    s_lshl_b32 s43, s26, 11
    s_add_u32 m0, s43, {XT}
    v_and_b32 v4, 31, v0
    s_lshl_b32 s40, s25, 16
    s_add_u32 s40, s40, 4096
    v_lshl_add_u32 v7, v4, 2, s41
    v_lshl_add_u32 v5, v3, 13, s40
    v_add_u32 v5, v5, v7
    v_add_u32 v6, 0xffffe400, v5
    v_lshlrev_b32 v8, 2, v7
    s_lshl_b32 s40, s24, {GSH}
    s_lshl_b32 s42, s25, {LSB+6}
    s_add_u32 s40, s40, s42
    v_and_b32 v11, 7, v0
    v_lshl_add_u32 v11, v11, 4, s40
    v_lshrrev_b32 v12, 3, v0
    v_lshl_add_u32 v11, v12, {LSB}, v11
    v_add_u32 v12, {32 << LSB}, v11
    s_mov_b32 s59, {SENT}
    v_mov_b32 v124, s59
    v_mov_b32 v125, s59
    v_mov_b64 v[126:127], v[124:125]
    s_mov_b32 s34, 0x200000
    s_mov_b32 s35, 0x20000
    s_mul_i32 s42, s25, 43
    s_lshr_b32 s42, s42, 7
    s_mul_i32 s42, s42, 3
    s_sub_u32 s42, s25, s42
    s_lshl2_add_u32 s42, s42, s26
    s_lshl_b32 s40, s24, 5
    s_add_u32 s42, s42, s40
    s_lshl_b32 s42, s42, 7
    s_add_u32 s42, s42, {CF}
    v_lshl_add_u32 v13, v15, 5, s42
    s_waitcnt lgkmcnt(0)
    """)
    tK = []; tw_ = []
    def kload(j):
        if j == 0: tw_.append(vm.issue(f"global_load_dwordx4 {vr(W0,4)}, v8, s[10:11]")); stamp(1)
        if j < 3: tK.append(vm.issue(f"buffer_load_dword v{K0+j}, v6, s[32:35], 0 offen offset:{1024*j}"))
        else: tK.append(vm.issue(f"global_load_dword v{K0+j}, v5, s[6:7] offset:{1024*(j-3)-4096}"))
    if cfg.kfirst: a("s_mov_b64 s[32:33], s[6:7]")
    for j in range(cfg.kfirst): kload(j)
    vm.issue("global_load_lds_dwordx4 v9, s[16:17]")
    a(f"s_add_u32 m0, s43, {XT+1024}\ns_mov_b64 s[32:33], s[6:7]")
    vm.issue("global_load_lds_dwordx4 v10, s[16:17]")
    if cfg.b0pos == 0: a("s_barrier")
    tP = vm.issue(f"global_load_dword v34, v13, s[22:23]")
    a(XSEL)
    vm.issue(f"global_store_dwordx4 v11, v[124:127], {XBASE}")
    tS = vm.issue(f"global_store_dwordx4 v12, v[124:127], {XBASE}")
    a(f"""
    s_add_u32 s44, s22, {FE}
    s_addc_u32 s45, s23, 0
    s_load_dword s27, s[44:45], 0
    {"s_barrier" if cfg.b0pos == 1 else ""}
    """)
    for j in range(cfg.kfirst, 11): kload(j)
    tW = tw_[0]
    tV = [vm.issue(f"global_load_dword v{V0+j}, v5, s[8:9] offset:{1024*j-4096}") for j in range(8)]
    vm.issue(f"global_load_dword v{DD}, v7, s[14:15]")
    if cfg.bi: a("s_barrier")
    a(".sec conv2 jump")
    if cfg.conv_prio: a(f"s_setprio {cfg.conv_prio}")
    a(f"""
    s_mov_b32 s58, 0
    {XCC}
    s_lshl_b32 s42, s24, 12
    s_add_u32 s42, s42, {CF}
    s_add_u32 s46, s22, s42
    s_addc_u32 s47, s23, 0
    s_mov_b64 s[36:37], {XBASE}
    s_mov_b64 s[38:39], {XBASE}
    v_mov_b64 v[36:37], 0
    v_mov_b64 v[38:39], 0
    v_and_b32 v9, 1, v3
    v_mul_u32_u24 v9, {XIS}, v9
    v_lshl_add_u32 v9, v4, 4, v9
    v_add_u32 v9, {XI}, v9
    v_lshrrev_b32 v10, 1, v1
    v_mul_u32_u24 v10, {HCS}, v10
    v_and_b32 v11, 1, v0
    v_lshl_add_u32 v10, v11, 4, v10
    v_cmp_gt_u32 vcc, 64, v0
    v_cndmask_b32 v9, v10, v9, vcc
    v_and_b32 v10, 7, v0
    v_lshlrev_b32 v10, 4, v10
    v_add_u32 v10, {FL}, v10
    v_cmp_gt_u32 vcc, 128, v0
    v_cndmask_b32 v9, v10, v9, vcc
    ds_write_b128 v9, v[36:39]
    s_lshl_b32 s42, s25, 2
    v_lshl_add_u32 v10, v1, 7, s42
    s_waitcnt lgkmcnt(0)
    {TAG}
    s_xor_b32 s29, s27, s28
    v_mov_b32 v33, s29
    s_mov_b64 exec, {(1 << cfg.nrep) - 1}
    s_waitcnt {vm.cnt(tS)}
    s_barrier
    """)
    vm.issue(f"global_store_dword v10, v33, s[46:47] offset:{CF_KV}")
    a("s_mov_b64 exec, -1")
    if cfg.pollpos == 0:
        a("v_lshlrev_b32 v11, 2, v4")
        if cfg.nrep > 1: a("v_lshl_add_u32 v11, v2, 7, v11")
        tP = vm.issue(f"global_load_dword v34, v11, s[46:47] offset:{CF_KV} sc1")
    stamp(2)
    a(gather_addr(14, 13))
    a(f"""
    s_lshr_b32 s48, s26, 1
    s_and_b32 s49, s26, 1
    s_lshl2_add_u32 s41, s25, s26
    s_lshl_b32 s41, s41, {LSB+4}
    s_add_u32 s41, s41, s40
    v_lshlrev_b32 v25, 10, v3
    v_lshl_add_u32 v25, v4, 2, v25
    v_lshlrev_b32 v11, 2, v4
    v_bfe_u32 v3, v0, 4, 2
    v_lshrrev_b32 v9, 1, v1
    v_lshl_add_u32 v9, v9, {LSB}, s41
    v_and_b32 v13, 1, v0
    v_lshl_add_u32 v9, v13, 6, v9
    v_bfe_u32 v13, v0, 4, 1
    v_lshl_add_u32 v9, v13, 5, v9
    v_bfe_u32 v12, v0, 5, 1
    v_lshl_add_u32 v9, v12, 4, v9
    v_add_u32 v29, {8 << LSB}, v9
    v_and_b32 v2, 63, v0
    v_and_b32 v13, 3, v0
    v_sub_u32 v12, 3, v13
    v_mul_u32_u24 v12, {HCS}, v12
    v_or_b32 v13, 3, v1
    v_lshl_add_u32 v12, v13, 1, v12
    v_lshl_add_u32 v12, v3, 4, v12
    s_mul_i32 s42, s48, {HCH}
    s_lshl_b32 s41, s49, 8
    s_add_u32 s42, s42, s41
    s_add_u32 s42, s42, {HC+2}
    v_add_u32 v12, s42, v12
    s_mul_i32 s42, s48, {XIS}
    s_sub_u32 s42, s42, s41
    s_add_u32 s42, s42, {XI+512-176}
    v_lshlrev_b32 v13, 1, v1
    v_sub_u32 v13, v13, v3
    v_lshl_add_u32 v13, v13, 4, s42
    v_bfe_u32 v24, v0, 1, 1
    v_mul_u32_u24 v24, {XIS}, v24
    v_bfe_u32 v26, v0, 2, 4
    v_lshl_add_u32 v24, v26, 5, v24
    v_and_b32 v26, 1, v0
    v_lshl_add_u32 v24, v26, 4, v24
    s_lshl_b32 s41, s26, 10
    v_add_u32 v24, s41, v24
    s_mov_b32 s52, 0
    s_mov_b32 s53, 0
    s_lshl_b32 s41, s26, 12
    s_add_u32 s41, s41, {PX}
    v_lshl_add_u32 v8, v2, 4, s41
    s_xor_b32 s41, s26, 1
    s_lshl_b32 s41, s41, 12
    s_add_u32 s41, s41, {PX}
    v_lshl_add_u32 v6, v2, 4, s41
    s_lshl2_add_u32 s41, s26, {FL}
    v_mov_b32 v10, s41
    v_and_b32 v4, 7, v0
    {"v_min_u32 v4, 4, v4" if cfg.lead2 else ""}
    v_lshlrev_b32 v4, 2, v4
    v_add_u32 v4, {FL}, v4
    v_mov_b32 v26, {FL+32}
    v_mov_b32 v35, 1
    v_mov_b32 v30, s29
    v_mov_b32 v31, s29
    s_mov_b32 s50, 0
    """)
    WP, KF, VF, AC = 152, 160, 184, 200
    vm.wait(tW)
    for j in range(4):
        for ch in range(2):
            src = W0 + 2*ch + (j >> 1)
            if j & 1: a(f"v_and_b32 v{WP+2*j+ch}, 0xffff0000, v{src}")
            else:     a(f"v_lshlrev_b32 v{WP+2*j+ch}, 16, v{src}")
    def rows(ns):
        for j in (3, 2, 1, 0):
            for n in ns:
                k = vr(KF + 2*(n + 3 - j), 2); w = vr(WP + 2*j, 2); d = vr(AC + 2*n, 2)
                if j == 3: a(f"v_pk_mul_f32 {d}, {k}, {w}")
                else:      a(f"v_pk_fma_f32 {d}, {k}, {w}, {d}")
    vm.wait(tK[6])
    for n in range(7): unp(KF+2*n, K0+n)
    rows(range(4))
    vm.wait(tK[10])
    stamp(3)
    for n in range(7, 11): unp(KF+2*n, K0+n)
    rows(range(4, 8))
    vm.wait(tV[3])
    SP = f"s_load_dwordx16 s[4:19], s[46:47], {CF_KV}\ns_load_dwordx16 s[84:99], s[46:47], {CF_KV+64}"
    if cfg.spoll == 1: a(SP)
    for n in range(4): unp(VF+2*n, V0+n)
    for n in range(4): a(f"v_pk_mul_f32 {vr(AC+2*n,2)}, {vr(AC+2*n,2)}, {vr(VF+2*n,2)}")
    for q in (2, 3):
        for ch in range(2):
            a(f"v_cvt_pk_bf16_f32 v{KVP+4*ch+q}, v{AC+2*(7-2*q)+ch}, v{AC+2*(6-2*q)+ch}")
    if cfg.pollpos == 1: tP = vm.issue(f"global_load_dword v34, v11, s[46:47] offset:{CF_KV} sc1")
    for q in (2, 3): a(f"v_permlane16_swap_b32 v{KVP+q}, v{KVP+4+q}")
    vm.wait(tV[7])
    if cfg.spoll == 2: a(SP)
    for n in range(4, 8): unp(VF+2*n, V0+n)
    for n in range(4, 8): a(f"v_pk_mul_f32 {vr(AC+2*n,2)}, {vr(AC+2*n,2)}, {vr(VF+2*n,2)}")
    for q in (0, 1):
        for ch in range(2):
            a(f"v_cvt_pk_bf16_f32 v{KVP+4*ch+q}, v{AC+2*(7-2*q)+ch}, v{AC+2*(6-2*q)+ch}")
    for q in (0, 1): a(f"v_permlane16_swap_b32 v{KVP+q}, v{KVP+4+q}")
    for n in range(2):
        vm.issue(f"global_store_dwordx4 v{(9, 29)[n]}, {vr(KVP+4*n,4)}, s[36:37]")
    if cfg.spoll == 3: a(SP)
    stamp(4)
    if cfg.spoll:
        a("L_look:\ns_waitcnt lgkmcnt(0)")
        for i in list(range(4, 20, 2)) + list(range(84, 100, 2)):
            a(f"v_cmpx_eq_u64 vcc, s[{i}:{i+1}], v[30:31]")
        a(f"""
        s_cbranch_vccnz L_looked
        s_mov_b64 exec, -1
        s_add_u32 s50, s50, 128
        s_cmp_ge_u32 s50, {128*cfg.nrep}
        s_cbranch_scc1 L_kvretry
        {f"s_sleep {cfg.repsleep}" if cfg.repsleep else ""}
        s_add_u32 s41, s50, 64
        s_load_dwordx16 s[4:19], s[46:47], s50
        s_load_dwordx16 s[84:99], s[46:47], s41
        s_branch L_look
        L_looked:
        """)
    XL = 100
    a(f"""
    L_kvok:
    """)
    GL = f"""
    global_load_dwordx4 {vr(XL,4)}, v14, s[36:37] sc1
    global_load_dwordx4 {vr(XL+4,4)}, v{14 if 'g' in cfg.hack else 15}, s[36:37] sc1
    """
    if cfg.gpos != 1: a(GL)
    stamp(5)
    a(f"""
    s_cmp_lg_u32 s49, 0
    s_cbranch_scc1 L_convB
    .sec varA jump
    """)
    slow_stubs = []
    def conv_variant(own, foreign, tg):
        a(f"""
        s_lshl_b32 s42, s48, 5
        s_add_u32 s41, s51, s42
        v_lshl_add_u32 v27, v1, {LSB+4}, s41
        v_lshl_add_u32 v27, v3, 3, v27
        v_add_u32 v{YA}, {own[0] << (LSB+8)}, v27
        v_add_u32 v{YA+1}, {own[1] << (LSB+8)}, v27
        v_add_u32 v{YA+2}, {own[2] << (LSB+8)}, v27
        v_add_u32 v{YA+3}, {own[3] << (LSB+8)}, v27
        s_mul_i32 s54, s53, {CF_SLOW}
        {"s_mov_b32 s40, 0" if cfg.lead2 else "s_lshr_b32 s40, s25, 3"}
        s_lshl_b32 s40, s40, 7
        s_add_u32 s40, s40, s54
        v_add_u32 v11, s40, v11
        s_mov_b32 s56, 0xffff
        s_mov_b32 s57, 0xffff
        s_barrier
        """)
        seq = []
        for ph, tiles in ((0, foreign), (1, own)):
            for v in range(max(tiles) + 1):
                for rr in range(4):
                    seq.append((ph, v, rr, [j for j in tiles if j >= v]))
        if cfg.solo:
            big = max(own); late_ = []
            for n, (ph, v, rr, tiles) in enumerate(seq):
                if ph == 1 and v >= cfg.solo - (7 - big):
                    late_.append((ph, v, rr, [big])); seq[n] = (ph, v, rr, [j for j in tiles if j != big])
            seq = [x for x in seq if x[3]] + late_
        aorder = []
        for (ph, v, rr, tiles) in seq:
            for j in tiles:
                if (j - v, rr) not in aorder: aorder.append((j - v, rr))
        areads = []
        for (u, rr) in aorder:
            f = AF + 4*(4*u + rr)
            areads.append(((u, rr, 0), f"ds_read_b64 {vr(f,2)}, v12 offset:{512*u+64*rr}"))
            areads.append(((u, rr, 1), f"ds_read_b64 {vr(f+2,2)}, v12 offset:{512*u+64*rr+8}"))
        lg = Lgkm(a)
        atok = {}
        def ard(n):
            for _ in range(n):
                if areads:
                    k, t = areads.pop(0)
                    atok[k] = lg.issue(t)
        if cfg.xdiag: stamp(13)
        ard(cfg.gdel)
        if cfg.gpos: a(GL)
        ard(cfg.apre - cfg.gdel)
        if cfg.xdiag:
            stamp(14); a("s_waitcnt vmcnt(0)"); stamp(15)
        XW = f"ds_write_b128 v24, {vr(XL,4)} offset:{XI+512}\nds_write_b128 v24, {vr(XL+4,4)} offset:{XI+512+512}"
        a(f"""
        v_add_u32 v25, {XT}, v25
        L_xpoll{tg}:
        s_waitcnt vmcnt(0)
        {XW if cfg.wfirst else ""}
        """)
        for i in range(8): a(f"v_cmpx_ne_u32 vcc, s59, v{XL+i}")
        a(f"""
        s_not_b64 exec, vcc
        s_cbranch_scc0 L_xok{tg}
        {"s_waitcnt lgkmcnt(0)" if cfg.wfirst else ""}
        {GL}
        s_mov_b64 exec, -1
        {BOUND}
        s_branch L_xpoll{tg}
        L_xok{tg}:
        s_mov_b64 exec, -1
        """)
        stamp(6)
        a(f"{'' if cfg.wfirst else XW}\ns_waitcnt lgkmcnt(0)")
        lg.done = lg.n
        if 'g' in cfg.hack: a("global_load_dwordx4 v[116:119], v15, s[36:37] sc1")
        a("s_barrier")
        stamp(7)
        vm = Vm(a)
        st = {}
        def accreg(ph, j):
            tiles = own if ph else foreign
            return ACC + 16*ph + 4*tiles.index(j)
        mf = []
        first, last, done = {}, {}, {}
        deferred = []
        for i, (ph, v, rr, tiles) in enumerate(seq):
            if ph == 1 and own == S1 and v == 6 and deferred:
                mf += deferred; deferred = []
            for j in tiles:
                if ph == 1 and own == S1 and j == 6 and v in (4, 5) and not cfg.solo: deferred.append((i, ph, j, j - v, rr))
                else: mf.append((i, ph, j, j - v, rr))
        for n, (i, ph, j, u, rr) in enumerate(mf):
            first.setdefault(i, n); last[i] = n
            done[ph, j] = n
        afirst = {}
        for n, (i, ph, j, u, rr) in enumerate(mf): afirst.setdefault((u, rr), n)
        tok = {}
        jobs = []
        def bread(i):
            ph, v, rr, _ = seq[i]
            def f():
                if 'b' in cfg.hack and i >= NB and i % 2: tok[i] = 0
                else: tok[i] = lg.issue(f"ds_read_b128 {vr(BR+4*(i % NB),4)}, v13 offset:{512*v+64*(3-rr)}")
            return f
        npre = sum(1 for i in range(len(seq)) if first[i] <= cfg.lead)
        for i in range(npre): bread(i)()
        for i in range(npre, len(seq)):
            jobs.append([first[i] - cfg.lead, last[i - NB] if i >= NB else 0, bread(i)])
        for k, t in areads:
            def f(k=k, t=t): atok[k] = lg.issue(t)
            jobs.append([afirst[k[:2]] - cfg.lead, 0, f])
        for j in foreign:
            def f(j=j): lg.issue(f"ds_write_b128 v8, {vr(accreg(0,j),4)} offset:{1024*foreign.index(j)}")
            jobs.append([done[0, j] + 6, done[0, j] + 5, f])
        jobs.append([done[0, max(foreign)] + 7.5, done[0, max(foreign)] + 7, lambda: lg.issue("ds_write_b32 v10, v35")])
        pxr = ["ds_read_b32 v34, v4"] + [f"ds_read_b128 {vr(ACC+4*t,4)}, v6 offset:{1024*t}" for t in range(4)]
        for n, x in enumerate(pxr):
            def f(x=x): st["px"] = lg.issue(x)
            jobs.append([cfg.px_at + n, cfg.px_at + n, f])
        if cfg.gate: jobs.append([cfg.gate, cfg.gate, lambda: lg.issue("ds_write_b32 v10, v35 offset:64")])
        Q0 = 248
        qreads = ["ds_read_b32 v28, v26"] + [f"ds_read2_b32 {vr(Q0+2*i,2)}, v25 offset0:{64*i} offset1:{64*i+32}" for i in range(4)]
        for n, x in enumerate(qreads):
            jobs.append([200 + n, 143, lambda x=x: lg.issue(x)])
        vjobs = []
        def chk_px():
            lg.wait(st["px"])
            a(f"""
            v_cmp_ne_u32 vcc, 1, v34
            s_cbranch_vccnz L_pxretry{tg}
            L_pxok{tg}:
            """)
            slow_stubs.append(f"L_pxretry{tg}:\n" + BOUND + "\n".join(pxr) + f"""
            s_waitcnt lgkmcnt(0)
            v_cmp_ne_u32 vcc, 1, v34
            s_cbranch_vccnz L_pxretry{tg}
            s_branch L_pxok{tg}
            """)
        vjobs.append([cfg.px_at + 4 + cfg.lead, chk_px])
        ystores = []
        for t, j in enumerate(own):
            r = accreg(1, j); p = ACC + 4*t
            e = done[1, j] + 5
            vjobs.append([e, lambda p=p, r=r: a(f"v_add_f32 v{p}, v{p}, v{r}\nv_add_f32 v{p+1}, v{p+1}, v{r+1}")])
            vjobs.append([e, lambda p=p, r=r: a(f"v_add_f32 v{p+2}, v{p+2}, v{r+2}\nv_add_f32 v{p+3}, v{p+3}, v{r+3}")])
            if t >= 4 - cfg.yhalf:
                vjobs.append([e, lambda p=p, r=r: a(f"v_cvt_pk_bf16_f32 v{r}, v{p}, v{p+1}\nv_cvt_pk_bf16_f32 v{r+2}, v{p}, v{p+1}")])
                vjobs.append([e, lambda p=p, r=r: a(f"v_cvt_pk_bf16_f32 v{r+1}, v{p+2}, v{p+3}\nv_cvt_pk_bf16_f32 v{r+3}, v{p+2}, v{p+3}")])
                vjobs.append([e, lambda r=r: a(f"v_permlane16_swap_b32 v{r}, v{r+2}\nv_permlane16_swap_b32 v{r+1}, v{r+3}")])
                ystores.append(f"s_mov_b64 exec, s[56:57]\nglobal_store_dwordx4 v{YA+t}, {vr(r,4)}")
                vjobs.append([e, lambda x=ystores[-1]: vm.issue(f"{x}, s[38:39] {cfg.xflag}\ns_mov_b64 exec, -1")])
            else:
                vjobs.append([e, lambda p=p: a(f"v_cvt_pk_bf16_f32 v{p}, v{p}, v{p+1}\nv_cvt_pk_bf16_f32 v{p+1}, v{p+2}, v{p+3}")])
                ystores.append(f"global_store_dwordx2 v{YA+t}, {vr(p,2)}")
                vjobs.append([e, lambda x=ystores[-1]: vm.issue(f"{x}, s[38:39] {cfg.xflag}")])
            if t == 0:
                def clrpoll(): st["poll"] = vm.issue(f"global_load_dword v14, v11, s[46:47] offset:{CF_Y} sc1")
                vjobs.append([cfg.poll_at, clrpoll])
        issued_at = {}
        def need(n):
            i, ph, j, u, rr = mf[n]
            return max(tok[i], atok[(u, rr, 1)])
        def slack(n):
            dl = sorted(x[0] for x in jobs)
            return all(d > n + k for k, d in enumerate(dl))
        started = set()
        late = 0
        lg.wait(need(0))
        for n, (i, ph, j, u, rr) in enumerate(mf):
            d = vr(accreg(ph, j), 4)
            c = d if (ph, j) in started else "0"
            started.add((ph, j))
            if not ('m' in cfg.hack and n % 6 == 5 and c != "0"):
                a(f"v_mfma_f32_16x16x32_bf16 {d}, {vr(AF+4*(4*u+rr),4)}, {vr(BR+4*(i % NB),4)}, {c}")
            if n + 1 in (36, 72, 108) and not cfg.xdiag: stamp({36: 13, 72: 14, 108: 15}[n + 1])
            issued_at[n] = lg.n
            nxt = mf[n + 1] if n + 1 < len(mf) else None
            ready = sorted([x for x in jobs if x[1] <= n], key=lambda x: x[0])
            mustwait = nxt is not None and nxt[0] in tok and (nxt[3], nxt[4], 1) in atok and need(n + 1) > lg.done
            if vjobs and vjobs[0][0] <= n and not mustwait and (slack(n) or not ready):
                vjobs.pop(0)[1]()
            elif ready:
                x = ready[0]
                if x[0] < n: late += 1
                jobs.remove(x); x[2]()
            elif vjobs and n < vjobs[0][0] <= n + 5 and not mustwait: a("s_nop 0")
            if nxt is not None:
                while nxt[0] not in tok or (nxt[3], nxt[4], 1) not in atok:
                    x = sorted([x for x in jobs if x[1] <= n], key=lambda x: x[0])[0]
                    jobs.remove(x); x[2](); late += 1
                if need(n + 1) > lg.done:
                    lg.wait(max(need(n + 1), issued_at.get(n - cfg.lead + 2, 0)))
        for x in sorted(jobs, key=lambda x: x[0]): x[2]()
        rest_v = len(vjobs)
        for x in vjobs: x[1]()
        print(f"variant {tg}: late LDS jobs {late}, vector jobs after the stream {rest_v}")
        a(f"""
        s_cmp_lg_u32 s53, 0
        s_cbranch_scc1 L_yslow{tg}
        L_yback{tg}:
        """)
        slow_stubs.append(f"L_yslow{tg}:\n" + "\n".join(x + ", s[36:37] sc1" for x in ystores) + f"\ns_mov_b64 exec, -1\ns_waitcnt vmcnt(0)\ns_branch L_yback{tg}")
        stamp(8)
        QF, QT = 128, 144
        YL, YF = 72, 80
        vm.wait(st["poll"])
        a(f"""
        v_cmp_ne_u32 vcc, s29, v14
        s_cbranch_vccnz L_clrretry{tg}
        L_clrok{tg}:
        """)
        slow_stubs.append(f"""
        L_clrretry{tg}:
        {BOUND}
        global_load_dword v14, v11, s[46:47] offset:{CF_Y} sc1
        s_waitcnt vmcnt(0)
        v_cmp_ne_u32 vcc, s29, v14
        s_cbranch_vccnz L_clrretry{tg}
        s_branch L_clrok{tg}
        """)
        stamp(9)
        YLD = f"""
        global_load_dwordx4 {vr(YL,4)}, v9, s[36:37] sc1
        global_load_dwordx4 {vr(YL+4,4)}, v29, s[36:37] sc1
        """
        for q in range(4): a(f"v_permlane16_swap_b32 v{KVP+q}, v{KVP+4+q}")
        unp(36, DD)
        for ch in range(2):
            for q in range(4):
                a(f"v_lshlrev_b32 v{QT+2*(7-2*q)+ch}, 16, v{KVP+4*ch+q}\nv_and_b32 v{QT+2*(6-2*q)+ch}, 0xffff0000, v{KVP+4*ch+q}")
        a(YLD)
        a(f"""
        v_lshlrev_b32 v12, 1, v5
        v_sub_u32 v12, v12, v7
        v_add_u32 v12, 0xfffff000, v12
        v_add_u32 v13, 8192, v12
        s_waitcnt lgkmcnt(0)
        v_cmp_ne_u32 vcc, 1, v28
        s_cbranch_vccnz L_qretry{tg}
        L_qok{tg}:
        """)
        slow_stubs.append(f"L_qretry{tg}:\n" + BOUND + "\n".join(qreads) + f"""
        s_waitcnt lgkmcnt(0)
        v_cmp_ne_u32 vcc, 1, v28
        s_cbranch_vccnz L_qretry{tg}
        s_branch L_qok{tg}
        """)
        for n in range(8): unp(QF+2*n, Q0+n)
        for n in range(8): a(f"v_pk_mul_f32 {vr(QT+2*n,2)}, {vr(QT+2*n,2)}, v[36:37]")
        for n in range(8): a(f"v_pk_mul_f32 {vr(QT+2*n,2)}, {vr(QT+2*n,2)}, {vr(QF+2*n,2)}")
        stamp(10)
        a(f"""
        L_ypoll{tg}:
        s_waitcnt vmcnt(0)
        """)
        for i in range(8): a(f"v_cmpx_ne_u32 vcc, s59, v{YL+i}")
        a(f"""
        s_not_b64 exec, vcc
        s_cbranch_scc0 L_yok{tg}
        {YLD}
        s_mov_b64 exec, -1
        {BOUND}
        s_branch L_ypoll{tg}
        L_yok{tg}:
        s_mov_b64 exec, -1
        s_nop 0
        """)
        stamp(11)
        for q in range(4): a(f"v_permlane16_swap_b32 v{YL+q}, v{YL+4+q}")
        for q in range(4):
            a(f"v_lshlrev_b32 v{YF+4*q}, 16, v{YL+q}\nv_and_b32 v{YF+4*q+2}, 0xffff0000, v{YL+q}")
            a(f"v_lshlrev_b32 v{YF+4*q+1}, 16, v{YL+4+q}\nv_and_b32 v{YF+4*q+3}, 0xffff0000, v{YL+4+q}")
            for n in (2*q, 2*q+1):
                a(f"v_pk_fma_f32 {vr(YF+2*n,2)}, {vr(YF+2*n,2)}, {vr(QF+2*n,2)}, {vr(QT+2*n,2)}")
            for n in (2*q, 2*q+1):
                a(f"v_cvt_pk_bf16_f32 v{YF+2*n}, v{YF+2*n}, v{YF+2*n+1}")
            for n in (2*q, 2*q+1):
                a(f"global_store_dword {'v12' if n < 4 else 'v13'}, v{YF+2*n}, s[20:21] offset:{2048*(n&3)-4096} {cfg.out_flag}")
        stamp_out(12)
        a("s_endpgm")
        for x in slow_stubs: a(x)
        slow_stubs.clear()
    conv_variant(S0, S1, "A")
    a(".sec varB\nL_convB:")
    conv_variant(S1, S0, "B")
    C1, BD, A1 = 16, 48, 80
    HD, HE, T = 128, 136, 140
    C0, CS1, TWC, TWS, CS2 = 192, 200, 208, 216, 224
    rFS, rLZ, rFV, rCL, rQ, rSE, rLF, rMD, rZA, rGZ, rGV, rZW, rZR, rZS = 108, 109, 110, 112, 114, 116, 120, 121, 122, 123, 124, 125, 126, 127
    rZR2 = 249
    rO, rZF, rONE, rLP, rP, rH, rE = 240, 242, 243, 244, 246, 247, 248
    m32 = cfg.z32 and not cfg.zx4
    HI, LO = ('v5', 'v6') if m32 else ('v9', 'v1')
    a(".sec aux1\nL_fnet:")
    if cfg.b0at == 0: a("s_barrier")
    role[0] = 'f'
    EPO = f"s_waitcnt lgkmcnt(0)\ns_add_u32 s44, s22, {FE}\ns_addc_u32 s45, s23, 0\ns_load_dword s27, s[44:45], 0"
    vm = Vm(a)
    stamp(1)
    if cfg.fnet_prio: a(f"s_setprio {cfg.fnet_prio}")
    a(f"""
    v_and_b32 v0, 255, v0
    s_and_b32 s26, s26, 3
    v_and_b32 v2, 3, v2
    s_mov_b32 s58, 0
    s_lshr_b32 s57, s25, 1
    {"s_add_u32 s40, s24, s57" if cfg.xrot else f"s_xor_b32 s40, s24, {cfg.xs}"}
    s_and_b32 s40, s40, 7
    s_and_b32 s56, s25, 1
    s_lshl1_add_u32 s56, s40, s56
    {EPO if cfg.b0at == 0 else ""}
    v_bfe_u32 v3, v0, 1, 4
    v_lshl_add_u32 v3, v2, 4, v3
    v_and_b32 v4, 1, v0
    v_bfe_u32 v5, v0, 5, 1
    v_mul_u32_u24 v6, s57, v3
    v_lshl_add_u32 v6, v4, 9, v6
    v_lshlrev_b32 v7, 4, v3
    v_and_b32 v8, 0xdf, v0
    v_cmp_eq_u32 vcc, 1, v8
    v_mov_b32 v9, 0x400
    v_cndmask_b32 v6, v6, 0, vcc
    v_cndmask_b32 v7, v7, v9, vcc
    v_lshlrev_b32 v9, 3, v5
    v_mad_u32_u24 v6, v9, v7, v6
    v_cvt_f32_u32 v6, v6
    v_cvt_f32_u32 v7, v7
    v_mul_f32 v10, {f32(1/2048)}, v6
    v_mul_f32 v7, {f32(1/2048)}, v7
    v_add_f32 v11, v10, v7
    v_add_f32 v12, v7, v7
    v_mov_b32 v13, v12
    v_mul_f32 v14, {f32(10.0)}, v7
    v_mov_b32 v15, v14
    v_and_b32 v8, 2, v0
    v_mul_u32_u24 v8, 0x4000, v8
    v_lshl_or_b32 v8, v8, 16, v8
    """)
    for ks in range(4):
        for i2 in range(4):
            a(f"v_cos_f32 v100, v10\nv_cos_f32 v101, v11")
            if not (ks == 3 and i2 == 3):
                a(f"v_pk_add_f32 v[10:11], v[10:11], {'v[12:13]' if i2 < 3 else 'v[14:15]'}")
            a(f"v_cvt_pk_bf16_f32 v{C1+4*ks+i2}, v100, v101")
            if 4*ks + i2 + 1 == cfg.b0at % 100: a(("s_barrier\n" if cfg.b0at < 100 and cfg.b0pos < 2 else "") + EPO)
    a(f"""
    v_and_b32 v6, 31, v0
    v_bfe_u32 v9, v0, 4, 2
    v_bfe_u32 v7, v0, 2, 2
    v_lshl_add_u32 v3, v5, 3, v7
    v_lshlrev_b32 v3, 6, v3
    v_and_b32 v10, 1, v9
    v_lshl_add_u32 v3, v10, 5, v3
    v_and_b32 v10, 3, v0
    v_lshl_add_u32 v3, v10, 3, v3
    v_add_u32 v3, {XT}, v3
    v_lshlrev_b32 v{rH}, 4, v0
    v_add_u32 v{rE}, -8, v{rH}
    s_lshl_b32 s34, s25, 13
    s_lshl_b32 s35, s24, 18
    s_add_u32 s34, s34, s35
    s_add_u32 s35, s34, 4096
    s_mov_b64 s[36:37], s[12:13]
    s_mov_b32 s38, 0x200000
    s_mov_b32 s39, 0x20000
    s_lshl_b32 s42, s24, {GSH}
    s_lshl_b32 s43, s25, {LSB+6}
    s_add_u32 s42, s42, s43
    v_lshrrev_b32 v{rP}, 2, v0
    v_lshl_add_u32 v{rP}, v{rP}, {LSB}, s42
    {XSEL}
    s_mov_b64 s[52:53], {XBASE}
    s_lshl_b32 s42, s26, 19
    s_lshl_b32 s43, s56, 11
    s_add_u32 s42, s42, s43
    """)
    a(f"""
    s_lshl_b32 s43, s57, 7
    s_add_u32 s42, s42, s43
    s_add_u32 s42, s42, {Z1W}
    v_lshl_add_u32 v{rZS}, v6, 2, s42
    """ if cfg.z32 else f"""
    s_and_b32 s43, s57, 3
    s_lshl_b32 s43, s43, 8
    s_add_u32 s42, s42, s43
    s_lshr_b32 s43, s57, 2
    s_lshl_b32 s43, s43, 6
    s_add_u32 s42, s42, s43
    s_add_u32 s42, s42, {Z1W}
    v_lshl_add_u32 v{rZS}, v1, 2, s42
    v_and_b32 v10, 1, v9
    v_lshl_add_u32 v{rZS}, v10, 10, v{rZS}
    """)
    a(f"""
    v_lshl_add_u32 v{rZS}, v5, 16, v{rZS}
    s_lshr_b32 s48, s25, 2
    s_lshl3_add_u32 s48, s24, s48
    s_and_b32 s49, s25, 3
    """)
    def addrs():
        a(gather_addr(rCL, 13))
        a(f"""
        s_lshl_b32 s40, s24, 12
        s_add_u32 s40, s40, {CF}
        s_add_u32 s46, s22, s40
        s_addc_u32 s47, s23, 0
        s_lshl_b32 s42, s26, 7
        s_lshl2_add_u32 s42, s25, s42
        v_mov_b32 v{rFS}, s42
        v_lshlrev_b32 v{rLZ}, 3, v0
        v_and_b32 v13, 7, v0
        s_xor_b32 s42, s24, {cfg.xs}
        s_lshl3_add_u32 s42, s25, s42
        s_lshl_b32 s42, s42, {cfg.zfs}
        s_add_u32 s42, s42, {ZF}
        v_lshl_add_u32 v{rGZ}, v13, {8+cfg.zfs}, s42
        {f"v_bfe_u32 v12, v0, 3, 3" if cfg.gzr > 1 else ""}
        {f"v_mul_u32_u24 v12, {(32 // cfg.gzr + 1) << (3+cfg.zfs)}, v12" if cfg.gzr > 1 else ""}
        {f"v_xor_b32 v{rGZ}, v{rGZ}, v12" if cfg.gzr > 1 else ""}
        s_lshl_b32 s42, s24, 5
        s_add_u32 s42, s42, s25
        {"" if cfg.xrot else "s_lshl2_add_u32 s42, s42, s26"}
        s_lshl_b32 s42, s42, {cfg.zfs+(3 if cfg.xrot else 1)}
        s_add_u32 s42, s42, {ZF}
        s_add_u32 s54, s22, s42
        s_addc_u32 s55, s23, 0
        s_lshl_b32 s42, s25, 16
        s_lshl_b32 s43, s24, 7
        s_add_u32 s42, s42, s43
        v_lshl_add_u32 v{rQ}, v13, 4, s42
        {f"v_and_b32 v13, 3, v0" if not cfg.gate else ""}
        v_lshlrev_b32 v13, 2, v13
        v_add_u32 v{rZF}, {FL+48}, v13
        v_bfe_u32 v13, v0, 3, 3
        v_lshl_add_u32 v{rQ}, v13, 10, v{rQ}
        v_mov_b32 v{rSE}, {SENT}
        v_mov_b32 v{rSE+1}, v{rSE}
        v_mov_b64 v[{rSE+2}:{rSE+3}], v[{rSE}:{rSE+1}]
        s_lshl2_add_u32 s42, s26, {FL}
        v_mov_b32 v{rLF}, s42
        v_mov_b32 v{rONE}, 1
        v_mov_b32 v{rMD}, {FL+80}
        s_lshl2_add_u32 s42, s48, s26
        s_lshl_b32 s42, s42, 13
        s_add_u32 s42, s42, {Z1W+4096}
        """)
        if cfg.zx4: a(f"""
        v_and_b32 v13, 7, v0
        v_lshl_add_u32 v{rZA}, v13, 4, s42
        v_lshl_add_u32 v{rZA}, v9, 9, v{rZA}
        v_bfe_u32 v13, v0, 3, 1
        v_lshl_add_u32 v{rZA}, v13, 11, v{rZA}
        s_mul_i32 s42, s26, 576
        s_add_u32 s42, s42, {ZL}
        v_lshl_add_u32 v{rZW}, v1, 4, s42
        v_mul_u32_u24 v13, 4608, v9
        v_add_u32 v{rZW}, v{rZW}, v13
        s_mul_i32 s42, s26, 4608
        s_add_u32 s42, s42, {ZL}
        v_lshl_add_u32 v{rZR}, v1, 2, s42
        v_mul_u32_u24 v13, 576, v9
        v_add_u32 v{rZR}, v{rZR}, v13
        v_add_u32 v{rZR2}, 2304, v{rZR}
        """)
        else: a(f"""
        {"v_lshl_add_u32 v13, v5, 7, v6" if cfg.z32 else "v_and_b32 v13, 63, v0"}
        v_lshl_add_u32 v{rZA}, v13, 2, s42
        s_lshl_b32 s42, s26, 9
        s_add_u32 s42, s42, {ZL}
        v_lshl_add_u32 v{rZW}, {LO}, 4, s42
        v_lshl_add_u32 v{rZW}, {HI}, 12, v{rZW}
        s_lshl_b32 s42, s26, 12
        s_add_u32 s42, s42, {ZL}
        v_lshl_add_u32 v{rZR}, v1, 4, s42
        v_lshl_add_u32 v{rZR}, v9, 9, v{rZR}
        """)
        a(f"""
        s_lshl2_add_u32 s42, s49, s26
        s_lshl_b32 s42, s42, 7
        s_add_u32 s42, s42, s48
        s_sub_u32 s43, 2048, s42
        s_add_u32 s41, s42, 64
        s_cmp_eq_u32 s48, 0
        s_cselect_b32 s43, s41, s43
        s_lshl_b32 s42, s42, 11
        s_lshl_b32 s43, s43, 11
        v_lshlrev_b32 v13, 5, v1
        v_lshl_add_u32 v13, v9, 3, v13
        v_add_u32 v{rO}, s42, v13
        v_add_u32 v{rO+1}, s43, v13
        s_mov_b32 s33, 0
        """)
    st = {}
    def hloads():
        vm.issue(f"buffer_load_dwordx4 {vr(HD,4)}, v{rH}, s[36:39], s34 offen")
        vm.issue(f"buffer_load_dwordx4 {vr(HD+4,4)}, v{rH}, s[36:39], {'s34' if 'h' in cfg.hack else 's35'} offen")
        a("s_mov_b64 exec, 1")
        vm.issue(f"buffer_load_dwordx2 {vr(HE,2)}, v{rE}, s[36:39], s34 offen")
        st["h"] = vm.issue(f"buffer_load_dwordx2 {vr(HE+2,2)}, v{rE}, s[36:39], s35 offen")
        a("s_mov_b64 exec, -1")
        if cfg.ppos == 1: vm.issue(f"global_load_dword v254, v{rP}, s[52:53] nt")
        stamp(11)
    if cfg.hpos == 4: hloads()
    addrs()
    if cfg.b0at > 100 and cfg.b0pos < 2: a("s_barrier")
    def c0chunk():
        a(f"""
        s_lshl_b32 s42, s49, 2
        v_add_lshl_u32 v7, v7, s42, 1
        v_bfe_u32 v10, v0, 1, 1
        v_and_b32 v12, v10, v4
        """)
        a(f"""
        v_lshlrev_b32 v12, 4, v12
        v_mov_b32 v13, -1
        s_cmp_lg_u32 s48, 0
        s_cbranch_scc1 L_generic
        v_add_u32 v7, v7, v10
        v_lshlrev_b32 v12, 3, v10
        v_lshlrev_b32 v13, 4, v10
        v_mov_b32 v14, 0xffff
        v_lshlrev_b32 v13, v13, v14
        L_generic:
        v_lshl_add_u32 v12, v4, 3, v12
        v_lshlrev_b32 v10, 2, {HI}
        v_mad_u32_u24 v12, v10, v7, v12
        v_lshlrev_b32 v10, 2, v9
        v_cvt_f32_u32 v12, v12
        v_cvt_f32_u32 v7, v7
        v_mul_f32 v12, {f32(1/32)}, v12
        v_mul_f32 v7, {f32(1/32)}, v7
        """)
        for i in range(8 if m32 else 4):
            a(f"v_cos_f32 v100, v12\nv_sin_f32 v101, v12")
            if i % 4 < 3: a("v_add_f32 v12, v12, v7")
            elif i == 3 and m32: a(f"v_fmamk_f32 v12, v7, {f32(5.0)}, v12")
            a(f"v_cvt_pk_bf16_f32 v100, v100, v101\nv_and_b32 v{C0+i}, v100, v13")
        a(f"""
        v_mul_u32_u24 v14, 0x8000, v4
        v_lshl_or_b32 v14, v14, 16, v14
        v_mul_u32_u24 v10, v10, v1
        v_cvt_f32_u32 v10, v10
        v_cvt_f32_u32 v11, v1
        """)

    def cs1():
        a(f"v_mul_f32 v12, {f32(1/16)}, v10\nv_mul_f32 v13, {f32(1/16)}, v11")
        for i in range(4):
            a(f"v_cos_f32 v100, v12\nv_sin_f32 v101, v12")
            if i < 3: a("v_add_f32 v12, v12, v13")
            a(f"v_cvt_pk_bf16_f32 v{CS1+i}, v100, v101\nv_cvt_pk_bf16_f32 v{CS1+4+i}, -v101, v100")
    def tw():
        a(f"v_mul_f32 v12, {f32(1/512)}, v10\nv_mul_f32 v13, {f32(1/512)}, v11")
        for mt in range(2):
            for r in range(4):
                a(f"v_cos_f32 v{TWC+4*mt+r}, v12\nv_sin_f32 v{TWS+4*mt+r}, v12")
                if r < 3: a("v_add_f32 v12, v12, v13")
                elif mt == 0: a(f"v_fmamk_f32 v12, v13, {f32(13.0)}, v12")
    def cs2():
        a(f"v_mul_f32 v12, {f32(1/32)}, v10\nv_mul_f32 v13, {f32(1/32)}, v11")
        for r in range(4):
            a(f"v_cos_f32 v{100+r}, v12\nv_sin_f32 v{104+r}, v12")
            if r < 3: a("v_add_f32 v12, v12, v13")
        for i in range(4): a(f"v_cvt_pk_bf16_f32 v{CS2+i}, v{100+2*i}, v{101+2*i}")
        for i in range(4): a(f"v_xor_b32 v{CS2+4+i}, v{CS2+i}, v14")
        for i in range(8): a(f"v_xor_b32 v{CS2+8+i}, 0x80000000, v{CS2+i}")
    chunks = [c0chunk, cs1, tw, cs2]
    for f in chunks[:cfg.npb]: f()
    chunks = chunks[cfg.npb:]
    if cfg.bi: a("s_barrier")
    if cfg.hpos == 3: hloads()
    a("s_waitcnt lgkmcnt(0)")
    stamp(2)
    a("s_barrier")
    lg = Lgkm(a)
    tk = []
    for ks in range(8):
        lg.issue(f"ds_read_b64_tr_b16 {vr(BD+4*ks,2)}, v3 offset:{1024*ks}")
        tk.append(lg.issue(f"ds_read_b64_tr_b16 {vr(BD+4*ks+2,2)}, v3 offset:{1024*ks+256}"))
    if cfg.hpos == 0: hloads()
    if cfg.ppos == 5: vm.issue(f"global_load_dword v254, v{rP}, s[52:53] nt")
    for ks in range(8):
        lg.wait(tk[ks])
        a(f"v_mfma_f32_32x32x16_bf16 {vr(A1,16)}, {vr(C1+4*ks,4)}, {vr(BD+4*ks,4)}, {vr(A1,16) if ks else 0}")
        if ks < 4:
            for i in range(4): a(f"v_xor_b32 v{C1+16+4*ks+i}, v{C1+4*ks+i}, v8")
    stamp(15)
    if cfg.hpos == 1: hloads()
    a(f"""
    {TAG}
    {XCC}
    s_xor_b32 s29, s27, s28
    s_mov_b32 s30, s27
    s_mov_b32 s31, s27
    v_mov_b32 v{rFV}, s29
    v_mov_b32 v{rGV}, s27
    """)
    for j in range(4):
        for b in range(2):
            a(f"v_cvt_pk_bf16_f32 v{BD+2*j+b}, v{A1+4*j+2*b}, v{A1+4*j+2*b+1}")
            if cfg.zdef:
                if j or b: a(f"v_add_u32 v{16+2*j+b}, {0x8000*(4*j+b)}, v{rZS}")
                else: a(f"v_mov_b32 v16, v{rZS}")
                continue
            tZ = vm.issue(f"global_store_dword v{rZS}, v{BD+2*j+b}, s[22:23] sc1")
            if not (j == 3 and b == 1):
                a(f"v_add_u32 v{rZS}, {0x8000 if b == 0 else 0x18000}, v{rZS}")
    if cfg.hpos == 2: hloads()
    if cfg.ppos == 2: vm.issue(f"global_load_dword v254, v{rP}, s[52:53] nt")
    stamp(3)
    a(".sec aux2 jump")
    for f in chunks[:cfg.npre]: f()
    def lzflag():
        a("s_mov_b64 exec, 1")
        vm.wait(tZ)
        vm.issue(f"global_store_dword v{rFS}, v{rFV}, s[46:47] offset:{CF_Z}")
        a("s_mov_b64 exec, -1")
        stamp(12)
    if cfg.lzpos == 3: lzflag()
    vm.wait(st["h"])
    stamp(4)
    if cfg.lzpos == 1: lzflag()
    for ch in range(2):
        d, e = HD + 4*ch, HE + 2*ch
        w = [e, e+1, d, d+1, d+2, d+3]
        t = T + 12*ch
        o = HC + 32 + ch*HCH
        a(f"ds_write_b128 v{rH}, {vr(d,4)} offset:{o}")
        for i in range(2): a(f"v_mov_b32_dpp v{e+i}, v{d+2+i} wave_shr:1 row_mask:0xf bank_mask:0xf")
        for i in range(4): a(f"v_alignbyte_b32 v{t+i}, v{w[i+2]}, v{w[i+1]}, 2")
        a(f"ds_write_b128 v{rH}, {vr(t,4)} offset:{o+HCS}")
        for i in range(4): a(f"v_mov_b32 v{t+4+i}, v{w[i+1]}")
        a(f"ds_write_b128 v{rH}, {vr(t+4,4)} offset:{o+2*HCS}")
        for i in range(4): a(f"v_alignbyte_b32 v{t+8+i}, v{w[i+1]}, v{w[i]}, 2")
        a(f"ds_write_b128 v{rH}, {vr(t+8,4)} offset:{o+3*HCS}")
    if cfg.lzpos == 2: lzflag()
    a("s_waitcnt lgkmcnt(0)")
    stamp(5)
    a("s_barrier")
    if cfg.lzpos == 0 and not cfg.zdef: lzflag()
    a(f"ds_read_b32 v{rMD}, v{rMD}")
    for f in chunks[cfg.npre:cfg.npre+cfg.nmid]: f()
    if cfg.aux_prio: a(f"s_setprio {cfg.aux_prio}")
    a(f"""
    s_waitcnt lgkmcnt(0)
    """)
    if cfg.zdef:
        for i in range(8): a(f"global_store_dword v{16+i}, v{BD+i}, s[22:23] sc1")
    a(f"""
    v_cmp_ne_u32 vcc, 0, v{rMD}
    s_cbranch_vccnz L_auxslow
    """)
    NZ = 8 if cfg.xrot else 2
    if cfg.zfs == 2: ZP_ = f"s_load_dwordx{NZ} s[8:{7+NZ}], s[54:55], 0 glc\n"
    else: ZP_ = "".join(f"s_load_dword s{8+i}, s[54:55], {i << cfg.zfs} glc\n" for i in range(NZ))
    ZC_ = "".join(f"s_cmp_eq_u64 s[{8+2*i}:{9+2*i}], s[30:31]\n" + ("s_cbranch_scc0 L_znot\n" if i < NZ//2 - 1 else "s_cbranch_scc1 L_zok\nL_znot:\n") for i in range(NZ//2))
    def side(fl, off, tg):
        q = ""
        for n in range(8):
            q += f"s_mov_b32 m0, {XT+1024*n}\n" + (f"v_add_u32 v{rQ}, 8192, v{rQ}\n" if n else "s_nop 0\n") + f"global_load_lds_dwordx4 v{rQ}, s[4:5]\n"
        LZ = f"global_load_dwordx2 {vr(rLP,2)}, v{rLZ}, s[46:47] offset:{off+CF_Z} sc1"
        CL = f"""
        global_store_dwordx4 v{rCL}, {vr(rSE,4)}, s[52:53] {fl}
        global_store_dwordx4 v{rCL+1}, {vr(rSE,4)}, s[52:53] {fl}
        """
        if cfg.lead2:
            cl = ""
            for n in range(8):
                cl += f"global_store_dwordx4 v{rCL}, {vr(rSE,4)}, s[52:53] {fl}\n" + (f"v_add_u32 v{rCL}, {256 << LSB}, v{rCL}\n" if n < 7 else "")
            return f"""
        s_cmp_lg_u32 s26, 0
        s_cbranch_scc1 L_nolead{tg}
        {LZ}
        s_barrier
        L_lzpoll{tg}:
        s_waitcnt vmcnt(0)
        v_cmp_ne_u32 vcc, s29, v{rLP}
        v_cmp_ne_u32 s[40:41], s29, v{rLP+1}
        s_or_b64 vcc, vcc, s[40:41]
        s_cbranch_scc0 L_lzok{tg}
        {LZ}
        {BOUND}
        s_branch L_lzpoll{tg}
        L_lzok{tg}:
        s_bfm_b64 exec, {8*cfg.gzr}, 0
        global_store_dword v{rGZ}, v{rGV}, s[22:23] sc1
        s_mov_b64 exec, -1
        {"s_memrealtime s[72:73]" if cfg.stamps else ""}
        {cl}
        {q}
        {ZP_}
        s_waitcnt vmcnt(8)
        ds_write_b32 v{rLF}, v{rONE} offset:16
        s_mov_b64 exec, 1
        global_store_dword v{rFS}, v{rFV}, s[46:47] offset:{off+CF_Y} {fl}
        s_mov_b64 exec, -1
        s_branch L_cleared{tg}
        L_nolead{tg}:
        s_barrier
        {ZP_}
        L_cleared{tg}:
        """
        if cfg.zdef: return f"""
        s_barrier
        {CL}
        s_mov_b64 exec, 1
        s_waitcnt vmcnt(2)
        global_store_dword v{rFS}, v{rFV}, s[46:47] offset:{off+CF_Z} {fl}
        {"s_memrealtime s[84:85]" if cfg.stamps else ""}
        s_waitcnt vmcnt(1)
        global_store_dword v{rFS}, v{rFV}, s[46:47] offset:{off+CF_Y} {fl}
        ds_write_b32 v{rLF}, v{rONE} offset:16
        s_mov_b64 exec, -1
        s_cmp_lg_u32 s26, 0
        s_cbranch_scc1 L_cleared{tg}
        L_lzpoll{tg}:
        {LZ}
        {BOUND}
        s_waitcnt vmcnt(0)
        v_cmp_ne_u32 vcc, s29, v{rLP}
        v_cmp_ne_u32 s[40:41], s29, v{rLP+1}
        s_or_b64 vcc, vcc, s[40:41]
        s_cbranch_scc1 L_lzpoll{tg}
        s_bfm_b64 exec, {8*cfg.gzr}, 0
        global_store_dword v{rGZ}, v{rGV}, s[22:23] sc1
        s_mov_b64 exec, -1
        {"s_memrealtime s[72:73]" if cfg.stamps else ""}
        {q}
        L_cleared{tg}:
        {ZP_}
        """
        return f"""
        s_cmp_lg_u32 s26, 0
        s_cbranch_scc1 L_nolead{tg}
        {LZ}
        s_barrier
        {CL}
        s_waitcnt vmcnt(2)
        L_lzpoll{tg}:
        v_cmp_ne_u32 vcc, s29, v{rLP}
        v_cmp_ne_u32 s[40:41], s29, v{rLP+1}
        s_or_b64 vcc, vcc, s[40:41]
        s_cbranch_scc0 L_lzok{tg}
        {LZ}
        {BOUND}
        s_waitcnt vmcnt(0)
        s_branch L_lzpoll{tg}
        L_lzok{tg}:
        s_bfm_b64 exec, {8*cfg.gzr}, 0
        global_store_dword v{rGZ}, v{rGV}, s[22:23] sc1
        s_mov_b64 exec, -1
        {"s_memrealtime s[72:73]" if cfg.stamps else ""}
        {"" if cfg.noq else q}
        s_waitcnt vmcnt({1 if cfg.noq else 9})
        s_branch L_cleared{tg}
        L_nolead{tg}:
        s_barrier
        {CL}
        s_waitcnt vmcnt(0)
        L_cleared{tg}:
        {ZP_}
        ds_write_b32 v{rLF}, v{rONE} offset:16
        s_mov_b64 exec, 1
        global_store_dword v{rFS}, v{rFV}, s[46:47] offset:{off+CF_Y} {fl}
        s_mov_b64 exec, -1
        """
    stamp(6); extra.add(('f', 12))
    a(side("", 0, "f"))
    a("L_auxjoin:")
    slow_stubs.append(f"""
    L_auxslow:
    s_mov_b32 s29, s27
    v_mov_b32 v{rFV}, s27
    s_add_u32 s52, s22, {KVS}
    s_addc_u32 s53, s23, 0
    s_mov_b64 exec, 1
    {"" if cfg.zdef else f"global_store_dword v{rFS}, v{rFV}, s[46:47] offset:{CF_SLOW+CF_Z} sc1"}
    s_mov_b64 exec, -1
    {side("sc1", CF_SLOW, "s")}
    s_branch L_auxjoin
    """)
    stamp(13)
    for f in chunks[cfg.npre+cfg.nmid:]: f()
    QF_ = f"ds_write_b32 v{rLF}, v{rONE} offset:32"
    a(f"""
    {"s_waitcnt vmcnt(0)" if cfg.nofnet2 else ""}
    {QF_ if cfg.nofnet2 else ""}
    {"s_endpgm" if cfg.nofnet2 else ""}
    L_zpoll:
    s_waitcnt lgkmcnt(0)
    {ZC_}
    {ZP_}
    {BOUND}
    s_add_u32 s33, s33, 1
    s_cmp_lt_u32 s33, 3
    s_cbranch_scc1 L_zpoll
    s_waitcnt vmcnt(0)
    {QF_}
    s_branch L_zpoll
    L_zok:
    """)
    stamp(7)
    ZD, A0, ZP = 48, 128, 80
    ZA, G = 48, 128
    if cfg.zx4:
        for L_ in range(2):
            for i in range(4):
                a(f"global_load_dwordx4 {vr(ZD+16*L_+4*i,4)}, v{rZA}, s[22:23] offset:{4096*L_+128*i-4096} {cfg.zld}")
        a(f"s_waitcnt vmcnt(8)\n{QF_}")
        if cfg.aux_prio and cfg.aux_drop == 1: a("s_setprio 0")
        stamp(14)
        def cvx(L_):
            for b in range(2):
                for e in range(4):
                    r = A0 + 16*L_ + 4*e + 2*b
                    a(f"v_cvt_pk_bf16_f32 v{ZP+4*(2*L_+b)+e}, v{r}, v{r+1}")
                a(f"ds_write_b128 v{rZW}, {vr(ZP+4*(2*L_+b),4)} offset:{2304*b+256*L_}")
        for L_ in range(2):
            a(f"s_waitcnt vmcnt({4-4*L_})")
            for e in range(4):
                for i in range(e + 1, 4): a(f"v_swap_b32 v{ZD+16*L_+4*i+e}, v{ZD+16*L_+4*e+i}")
            for e in range(4):
                a(f"v_mfma_f32_16x16x32_bf16 {vr(A0+16*L_+4*e,4)}, {vr(C0,4)}, {vr(ZD+16*L_+4*e,4)}, 0")
        stamp(8)
        cvx(0); cvx(1)
        a(f"ds_write_b32 v{rLF}, v{rONE} offset:48\ns_or_b32 s42, s2, s26")
        if cfg.aux_prio and cfg.aux_drop == 2: a("s_setprio 0")
        a(f"L_zl:\nds_read_b32 v8, v{rZF}")
        for row in range(2):
            for mt in range(2):
                for hh in range(2):
                    a(f"ds_read2_b32 {vr(ZA+8*row+4*mt+2*hh,2)}, v{(rZR, rZR2)[row]} offset0:{16*mt+64*hh} offset1:{16*mt+64*hh+32}")
        a(f"""
        s_waitcnt lgkmcnt(8)
        v_cmp_ne_u32 vcc, 1, v8
        s_cbranch_vccz L_zlok
        L_zlw:
        {BOUND}
        {f"s_sleep {cfg.zlsleep}" if cfg.zlsleep else ""}
        {f"ds_read_b32 v8, v{rZF}" if cfg.zlite else ""}
        s_waitcnt lgkmcnt(0)
        {"v_cmp_ne_u32 vcc, 1, v8" if cfg.zlite else ""}
        {"s_cbranch_vccnz L_zlw" if cfg.zlite else ""}
        s_branch L_zl
        L_zlok:
        """)
        stamp(9)
        n = 0
        for row in range(2):
            for mt in range(2):
                n += 1
                a(f"s_waitcnt lgkmcnt({8-2*n})")
                for c in range(2):
                    a(f"v_mfma_f32_16x16x32_bf16 {vr(G+16*row+8*mt+4*c,4)}, {vr(ZA+8*row+4*mt,4)}, {vr(CS1+4*c,4)}, 0")
    else:
        ZD, A0, ZP = 48, 128, 80
        for dl in range(4):
            for hf in range(2):
                for i in range(4):
                    a(f"global_load_dword v{ZD+8*dl+4*hf+i}, v{rZA}, s[22:23] offset:{2048*dl+1024*hf+(128 if cfg.z32 else 256)*i-4096} {cfg.zld}")
        a(f"s_waitcnt vmcnt(32)\n{QF_}")
        if cfg.aux_prio and cfg.aux_drop: a("s_setprio 0")
        stamp(14)
        def cv(dl, hf):
            for b in range(2):
                r = A0 + (16 if cfg.z32 else 8)*dl + 4*hf + 2*b
                a(f"v_cvt_pk_bf16_f32 v{ZP+4*(2*hf+b)+dl}, v{r}, v{r+1}")
        for dl in range(4):
            for hf in range(2):
                a(f"s_waitcnt vmcnt({32-8*dl-4*hf-4})")
                if cfg.z32:
                    d = vr(A0+16*dl, 16)
                    a(f"v_mfma_f32_32x32x16_bf16 {d}, {vr(C0+4*hf,4)}, {vr(ZD+8*dl+4*hf,4)}, {d if hf else 0}")
                else:
                    a(f"v_mfma_f32_16x16x32_bf16 {vr(A0+8*dl+4*hf,4)}, {vr(C0,4)}, {vr(ZD+8*dl+4*hf,4)}, 0")
        stamp(8)
        for dl in range(4):
            for hf in range(2): cv(dl, hf)
        for hf in range(2):
            for b in range(2):
                a(f"ds_write_b128 v{rZW}, {vr(ZP+4*(2*hf+b),4)} offset:{2048*b+(8192 if cfg.z32 else 256)*hf}")
        ZA, G = 48, 128
        a(f"ds_write_b32 v{rLF}, v{rONE} offset:48\ns_or_b32 s42, s2, s26\nL_zl:\nds_read_b32 v8, v{rZF}")
        for row in range(2):
            for mt in range(2):
                a(f"ds_read_b128 {vr(ZA+8*row+4*mt,4)}, v{rZR} offset:{2048*row+256*mt}")
        a(f"""
        s_waitcnt lgkmcnt(4)
        v_cmp_ne_u32 vcc, 1, v8
        s_cbranch_vccz L_zlok
        {BOUND}
        s_waitcnt lgkmcnt(0)
        {f"s_sleep {cfg.zlsleep}" if cfg.zlsleep else ""}
        s_branch L_zl
        L_zlok:
        """)
        stamp(9)
        n = 0
        for row in range(2):
            for mt in range(2):
                n += 1
                a(f"s_waitcnt lgkmcnt({4-n})")
                for c in range(2):
                    a(f"v_mfma_f32_16x16x32_bf16 {vr(G+16*row+8*mt+4*c,4)}, {vr(ZA+8*row+4*mt,4)}, {vr(CS1+4*c,4)}, 0")

    GP, TM, YO = 64, 96, 160
    def fin(row):
        for nt in range(2):
            y = YO+8*row+4*nt
            a(f"v_cvt_pk_bf16_f32 v{y}, v{y}, v{y+1}\nv_cvt_pk_bf16_f32 v{y+1}, v{y+2}, v{y+3}")
            a(f"global_store_dwordx2 v{rO+row}, {vr(y,2)}, s[20:21] offset:{1024+512*nt} {cfg.fout_flag}")
    for row in range(2):
        for mt in range(2):
            re, im = G+16*row+8*mt, G+16*row+8*mt+4
            for h in range(2):
                tc = vr(TWC+4*mt+2*h, 2)
                a(f"v_pk_mul_f32 {vr(TM+4*h,2)}, {vr(re+2*h,2)}, {tc}")
                a(f"v_pk_mul_f32 {vr(TM+4*h+2,2)}, {vr(im+2*h,2)}, {tc}")
            for h in range(2):
                ts = vr(TWS+4*mt+2*h, 2)
                a(f"v_pk_fma_f32 {vr(TM+4*h,2)}, {vr(im+2*h,2)}, {ts}, {vr(TM+4*h,2)}")
                a(f"v_pk_fma_f32 {vr(TM+4*h+2,2)}, {vr(re+2*h,2)}, {ts}, {vr(TM+4*h+2,2)} neg_lo:[1,0,0] neg_hi:[1,0,0]")
            p = GP + 8*row + 4*mt
            for h in range(2):
                a(f"v_cvt_pk_bf16_f32 v{p+h}, v{TM+4*h}, v{TM+4*h+1}")
                a(f"v_cvt_pk_bf16_f32 v{p+2+h}, v{TM+4*h+2}, v{TM+4*h+3}")
            if (row, mt) == (1, 0): fin(0)
            for nt in range(2):
                d = vr(YO+8*row+4*nt, 4)
                a(f"v_mfma_f32_16x16x32_bf16 {d}, {vr(p,4)}, {vr(CS2+8*nt+4*mt,4)}, {d if mt else 0}")
    a(f"""
    s_cmp_lg_u32 s42, 0
    s_cbranch_scc1 L_noepoch
    v_mov_b32 v7, 0
    s_mov_b64 exec, 1
    global_store_dword v7, v{rGV}, s[44:45]
    s_mov_b64 exec, -1
    L_noepoch:
    s_nop 5
    """)
    fin(1)
    stamp_out(10)
    a("L_exit:\ns_endpgm")
    for x in slow_stubs: a(x)
    slow_stubs.clear()
    a(f"""
    .sec kvslow
    L_kvretry:
    global_load_dword v34, v11, s[46:47] offset:{CF_KV} sc1
    s_add_u32 s52, s52, 1
    s_waitcnt vmcnt(0)
    v_cmp_ne_u32 vcc, s29, v34
    s_cbranch_vccz L_kvok
    s_cmp_gt_u32 s52, {cfg.timeout}
    s_cbranch_scc0 L_kvretry
    s_branch L_kvcheck
    L_kvcheck:
    {BOUND}
    s_xor_b32 s55, s27, 0x5bd1e995
    v_mov_b32 v36, s55
    v_mov_b32 v37, s29
    s_lshl_b32 s40, s25, 3
    v_mov_b32 v38, s40
    s_mov_b64 exec, 1
    global_store_dwordx2 v38, v[36:37], s[46:47] offset:{CF_HELLO} sc1
    s_mov_b64 exec, -1
    v_lshlrev_b32 v38, 1, v11
    global_load_dwordx2 v[36:37], v38, s[46:47] offset:{CF_HELLO} sc1
    s_waitcnt vmcnt(0)
    v_cmp_eq_u32 s[56:57], s55, v36
    v_cmp_ne_u32 vcc, s29, v37
    s_and_b64 s[56:57], s[56:57], vcc
    v_xor_b32 v37, s27, v37
    v_cmp_gt_u32 vcc, 16, v37
    s_and_b64 s[56:57], s[56:57], vcc
    s_cbranch_scc1 L_goslow
    s_sleep 8
    s_branch L_kvretry
    L_goslow:
    s_mov_b32 s53, 1
    s_mov_b32 s29, s27
    v_mov_b32 v33, s27
    v_mov_b32 v36, {FL+80}
    ds_write_b32 v36, v35
    s_add_u32 s36, s22, {KVS}
    s_addc_u32 s37, s23, 0
    s_add_u32 s38, s22, {DUMMY}
    s_addc_u32 s39, s23, 0
    global_store_dwordx4 v9, {vr(KVP,4)}, s[36:37] sc1
    global_store_dwordx4 v29, {vr(KVP+4,4)}, s[36:37] sc1
    s_lshl2_add_u32 s40, s25, s26
    s_lshl_b32 s40, s40, 2
    v_mov_b32 v36, s40
    v_lshlrev_b32 v37, 3, v2
    s_waitcnt vmcnt(0) lgkmcnt(0)
    s_mov_b64 exec, 1
    global_store_dword v36, v33, s[46:47] offset:{CF_SLOW+CF_KV} sc1
    s_mov_b64 exec, -1
    L_kvslowpoll:
    global_load_dwordx2 v[38:39], v37, s[46:47] offset:{CF_SLOW+CF_KV} sc1
    s_waitcnt vmcnt(0)
    v_cmp_ne_u32 vcc, s29, v38
    v_cmp_ne_u32 s[56:57], s29, v39
    s_or_b64 vcc, vcc, s[56:57]
    s_cbranch_scc0 L_kvok
    {BOUND}
    s_sleep 8
    s_branch L_kvslowpoll
    """)
    secs, cur = {"entry": []}, "entry"
    for line in a.text().split("\n"):
        if line.startswith(".sec"):
            p = line.split()
            if len(p) > 2: secs[cur].append(f"    s_branch L_sec_{p[1]}")
            cur = p[1]; secs[cur] = [f"L_sec_{cur}:"]
        else: secs[cur].append(line)
    pages = {0: [["entry", "conv2", "varA", "varB", "aux1", "aux2", "kvslow"]],
             1: [["entry", "aux1"], ["conv2", "kvslow"], ["varA"], ["varB"], ["aux2"]],
             2: [["entry", "conv2", "varA", "varB", "aux1", "aux2", "kvslow"]],
             3: [["entry", "conv2", "kvslow"], ["varA"], ["varB"], ["aux1", "aux2"]],
             4: [["entry", "aux1"], ["conv2", "aux2"], ["varA"], ["varB", "kvslow"]],
             5: [["entry", "aux1", "conv2", "aux2", "varA", "varB", "kvslow"]],
            }[cfg.layout]
    body = ".p2align 12\n".join("\n".join(l for n in pg for l in secs[n]) + "\n" for pg in pages) + "L_code_end:\n"
    hdr = open("concat_heads__ssm_conv_h3__spectral_fnet__prompt.s.ref").read().split("; Override")[0]
    txt = hdr + f"; @launch grid=(256,1,1) block=(512,1,1) lds={LDS_BYTES}\n"
    txt += f""".amdgcn_target "amdgcn-amd-amdhsa--gfx950"
.text
.globl {KN}
{".p2align 12" if cfg.layout else ""}
{f".fill {cfg.epad // 4}, 4, 0xbf800000" if cfg.epad else ""}
.p2align 8
.type {KN},@function
{KN}:
""" + body + f""".section .rodata,"a"
.p2align 6
.amdhsa_kernel {KN}
  .amdhsa_next_free_vgpr 256
  .amdhsa_next_free_sgpr 100
  .amdhsa_accum_offset 256
  .amdhsa_group_segment_fixed_size 0
  .amdhsa_kernarg_size 112
  .amdhsa_user_sgpr_count 2
  .amdhsa_user_sgpr_kernarg_segment_ptr 1
  .amdhsa_system_sgpr_workgroup_id_x 1
  .amdhsa_float_denorm_mode_32 3
.end_amdhsa_kernel
"""
    return txt, a

if __name__ == "__main__":
    cfg = Cfg()
    out = sys.argv[1]
    for kv in sys.argv[2:]:
        k, v = kv.split("=")
        cur = getattr(cfg, k)
        setattr(cfg, k, (v == "1") if isinstance(cur, bool) else type(cur)(v))
    txt, a = gen(cfg)
    bad = check_inflight(a)
    for b in bad: print("INFLIGHT:", b)
    assert not bad
    open(out, "w").write(txt)
    print("instructions:", sum(1 for i in a.ins if not (i.label or i.directive)), "pad states:", a.pads)
```

```python
import sys, struct
from asmlib import *

KN = "concat_heads__ssm_conv_h3__spectral_fnet__prompt_kernel"
def f32(x): return "0x%08x" % struct.unpack("<I", struct.pack("<f", x))[0]

class Cfg:
    stamps = False
    cyc = False
    probe = ''
    zfs = 7
    timeout = 64
    force_slow = False
    out_flag = "nt"
    xflag = ""
    conv_prio = 0
    fnet_prio = 0
    pf = 5
    xdiag = 0
    ypos = 0
    ychk = 1
    nopk = 0
    chk = 0
    lchk = 0
    tpre = 1
    gate0 = 0
    prio2 = 0
    delay0 = 0
    own = 1
    kfirst = 0
    bi = 0
    hack = ''
    lead2 = 0
    zlite = 1
    gzr = 1
    zx4 = 1
    solo = 0
    yhalf = 0
    wfirst = 1
    zdef = 0
    gpos = 1
    gdel = 0
    apre = 64
    aper = 1
    z32 = 1
    gperm = 0
    noq = 0
    layout = 1
    epad = 0
    npb = 2
    b0pos = 1
    b0at = 8
    xout = 2
    fout_flag = 'nt'
    pollpos = 2
    nrep = 4
    repsleep = 0
    spoll = 3
    xs = 1
    xrot = 0
    align = 0
    zld = 'sc1'
    poll_at = 112
    zgate = 2
    touch = 0
    fpre = 0
    addr_at = 0
    npre = 2
    cpf = 2
    lead = 9
    px_at = 90
    nos = 0
    gxor = 0
    nmid = 1
    hpos = 0
    aux_prio = 1
    aux_drop = 2
    gate = 128
    zlsleep = 0
    lzpos = 0
    pflag = 'nt'
    qpos = 0
    sflag = ''
    ppos = 7
    zearly = 0
    nofnet2 = False

KVF = 0x000000
ZF = 0x200000
CF = 0x240000
FE = 0x250000
Z1W = 0x280000
SPARE = 0x480000
KVS = 0x600000
DUMMY = 0xa00000
ALT = 0xe00000
CF_KV, CF_Z, CF_Y = 0, 512, 1024
CF_SLOW = 1536
CF_HELLO = 3072
STAMP = 0x4000000
HC, HCS, HCH = 0, 4160, 16640
XI, XIS = 33280, 4672
PX = XI + 2*XIS
XT = PX + 16384
ZL = XT + 8192
FL = ZL + 18432
LDS_BYTES = FL + 128
S0, S1 = (0, 3, 4, 7), (1, 2, 5, 6)
SENT = 0x7f817f81
BOUND = "s_add_u32 s58, s58, 1\ns_cmp_gt_u32 s58, 0x1000000\ns_cbranch_scc1 L_exit\n"
TAG = "s_mul_i32 s27, s27, 0x9e3779b1\ns_add_u32 s27, s27, 0x7f4a7c15\n"

def gen(cfg):
    a = Asm()
    role = ['c']
    uid = [0]
    extra = set()
    def stamp(i):
        extra.add((role[0], i))
        if cfg.stamps or (cfg.probe and (i == 0 or cfg.probe == role[0] + str(i))):
            a(f"{'s_memtime' if cfg.cyc else 's_memrealtime'} s[{60+2*i}:{61+2*i}]")
    def stamp_out(n):
        uid[0] += 1
        if cfg.probe and cfg.probe[0] == 's':
            sel = cfg.probe[1:]
            a(f"""
            s_waitcnt vmcnt(0) lgkmcnt(0)
            s_lshl_b32 s40, s2, 7
            s_add_u32 s40, s40, 0x1300000
            v_mov_b32 v1, s40
            v_mov_b32 v2, s60
            global_store_dword v1, v2, s[22:23] sc1
            s_waitcnt vmcnt(0)
            s_cmp_lg_u32 s2, 0
            s_cbranch_scc1 L_exit
            L_pa_{uid[0]}:
            s_sleep 1
            s_memrealtime s[42:43]
            s_waitcnt lgkmcnt(0)
            s_sub_u32 s41, s42, s60
            s_cmp_lt_u32 s41, 1200
            s_cbranch_scc1 L_pa_{uid[0]}
            s_add_u32 s44, s22, 0x1300000
            s_addc_u32 s45, s23, 0
            """)
            for x in range(8): a(f"s_load_dword s{4+x}, s[44:45], {128*x} glc")
            a("s_waitcnt lgkmcnt(0)\ns_mov_b32 s12, s4\ns_mov_b32 s13, s4")
            for x in range(1, 8): a(f"s_min_u32 s12, s12, s{4+x}\ns_max_u32 s13, s13, s{4+x}")
            a(f"""
            s_sub_u32 s40, {'s13' if sel == 'max' else 's12' if sel == 'z' else 's' + str(4 + int(sel))}, s12
            s_min_u32 s40, s40, 1000
            s_lshl_b32 s40, s40, 3
            s_add_u32 s40, s40, 2000
            L_probe_{uid[0]}:
            s_sleep 1
            s_memrealtime s[42:43]
            s_waitcnt lgkmcnt(0)
            s_sub_u32 s41, s42, s12
            s_cmp_lt_u32 s41, s40
            s_cbranch_scc1 L_probe_{uid[0]}
            """)
            return
        if cfg.probe:
            i = int(cfg.probe[1:]) if cfg.probe[0] == role[0] else 0
            a("s_waitcnt vmcnt(0)")
            stamp(n)
            a(f"""
            s_waitcnt lgkmcnt(0)
            s_sub_u32 s40, s{60+2*i}, s60
            s_lshl_b32 s40, s40, 2
            s_add_u32 s40, s40, 2000
            L_probe_{uid[0]}:
            s_sleep 1
            s_memrealtime s[42:43]
            s_waitcnt lgkmcnt(0)
            s_sub_u32 s41, s42, s60
            s_cmp_lt_u32 s41, s40
            s_cbranch_scc1 L_probe_{uid[0]}
            """)
            return
        if not cfg.stamps: return
        a("s_waitcnt vmcnt(0)")
        stamp(n)
        a("s_waitcnt lgkmcnt(0)")
        for i in range(16):
            a(f"v_mov_b32 v{40+i}, s{60+2*i}" if (role[0], i) in extra else f"v_mov_b32 v{40+i}, s60")
        a(f"""
        s_lshl_b32 s40, s2, 2
        s_add_u32 s40, s40, s26
        s_lshl_b32 s40, s40, 6
        s_add_u32 s40, s40, {STAMP + (0 if role[0] == 'c' else 256*4*64)}
        v_mov_b32 v1, s40
        s_mov_b64 exec, 1
        global_store_dwordx4 v1, v[40:43], s[22:23]
        global_store_dwordx4 v1, v[44:47], s[22:23] offset:16
        global_store_dwordx4 v1, v[48:51], s[22:23] offset:32
        global_store_dwordx4 v1, v[52:55], s[22:23] offset:48
        """)
    def unp(dst, src): a(f"v_lshlrev_b32 v{dst}, 16, v{src}\nv_and_b32 v{dst+1}, 0xffff0000, v{src}")
    XCC = "s_and_b32 s28, s25, 1" if cfg.force_slow else "s_getreg_b32 s28, hwreg(HW_REG_XCC_ID, 0, 4)"
    LSB = 11 if cfg.xout else 7
    GSH = 7 if cfg.xout else 18
    XBASE = "s[18:19]" if cfg.xout == 2 else "s[20:21]" if cfg.xout else "s[22:23]"
    XSEL = f"""
    s_add_u32 s18, s22, {ALT-128}
    s_addc_u32 s19, s23, 0
    s_cmp_eq_u32 s24, 3
    s_cselect_b64 s[18:19], s[18:19], s[20:21]
    """ if cfg.xout == 2 else ""
    def gather_addr(va, tmp):
        return f"""
        s_lshl_b32 s40, s24, {GSH}
        s_lshr_b32 s41, s25, 1
        s_lshl_b32 s41, s41, {LSB}
        s_add_u32 s51, s40, s41
        s_and_b32 s41, s25, 1
        s_lshl_b32 s41, s41, 6
        s_add_u32 s51, s51, s41
        s_lshl_b32 s41, s26, {LSB+9}
        s_add_u32 s41, s41, s51
        v_and_b32 v{tmp}, 3, v0
        v_lshl_add_u32 v{tmp}, v{tmp}, 4, s41
        v_bfe_u32 v{va}, v0, 2, 4
        v_lshl_add_u32 v{va}, v{va}, {LSB+4}, v{tmp}
        v_add_u32 v{va+1}, {256 << LSB}, v{va}
        """
    K0, V0, W0 = 128, 140, 148
    KVP, DD = 16, 32
    ACC, BR, NB, AF = 36, 68, 12, 128
    YA = 120
    vm = Vm(a)
    if cfg.align:
        a(f"""
        s_memrealtime s[4:5]
        s_and_b32 s7, s2, 7
        s_mul_i32 s7, s7, {cfg.align-1}
        s_waitcnt lgkmcnt(0)
        s_add_u32 s6, s4, 0x1100
        s_and_b32 s6, s6, 0xfffff000
        s_add_u32 s6, s6, s7
        L_align:
        s_memrealtime s[4:5]
        s_waitcnt lgkmcnt(0)
        s_sub_u32 s4, s4, s6
        s_cmp_lt_i32 s4, 0
        s_cbranch_scc1 L_align
        s_branch L_start
        .p2align 12
        L_start:
        """)
    if cfg.delay0:
        a(f"s_and_b32 s3, s2, 7\ns_cbranch_scc1 L_nodelay\ns_sleep {cfg.delay0}\nL_nodelay:")
    stamp(0)
    a(f"""
    s_load_dwordx16 s[4:19], s[0:1], 0
    s_load_dwordx2 s[22:23], s[0:1], 104
    s_load_dwordx2 s[20:21], s[0:1], 88
    s_cmp_ge_u32 s2, 256
    s_cbranch_scc1 L_exit
    v_lshrrev_b32 v2, 6, v0
    v_and_b32 v1, 15, v0
    v_readfirstlane_b32 s26, v2
    s_and_b32 s24, s2, 7
    {f"s_xor_b32 s24, s24, {cfg.gxor}" if cfg.gxor else ""}
    {"s_lshl_b32 s24, s24, 2" if cfg.gperm else ""}
    {"s_lshr_b32 s24, 0x65421073, s24" if cfg.gperm else ""}
    {"s_and_b32 s24, s24, 7" if cfg.gperm else ""}
    s_lshr_b32 s25, s2, 3
    s_cmp_ge_u32 s26, 4
    s_cbranch_scc1 L_fnet
    s_getpc_b64 s[30:31]
    L_pc:
    s_lshl_b32 s40, s25, 10
    v_lshrrev_b32 v3, 5, v0
    v_lshl_add_u32 v4, v3, 7, s40
    v_min_u32 v4, L_code_end-L_pc-4, v4
    """)
    vm.issue("global_load_dword v255, v4, s[30:31]")
    a(f"""
    s_lshr_b32 s43, s25, 1
    {"s_add_u32 s41, s24, s43" if cfg.xrot else f"s_xor_b32 s41, s24, {cfg.xs}"}
    s_and_b32 s41, s41, 7
    s_lshl3_add_u32 s41, s43, s41
    s_and_b32 s42, s25, 1
    s_lshl1_add_u32 s42, s41, s42
    s_lshl_b32 s42, s42, 6
    s_lshl_b32 s41, s24, 7
    v_bfe_u32 v9, v0, 2, 4
    v_lshl_add_u32 v9, v2, 5, v9
    v_and_b32 v15, 3, v0
    v_lshl_add_u32 v10, v15, 4, s42
    v_lshl_add_u32 v9, v9, 14, v10
    v_add_u32 v10, 0x40000, v9
    s_lshl_b32 s43, s26, 11
    s_add_u32 m0, s43, {XT}
    v_and_b32 v4, 31, v0
    s_lshl_b32 s40, s25, 16
    s_add_u32 s40, s40, 4096
    v_lshl_add_u32 v7, v4, 2, s41
    v_lshl_add_u32 v5, v3, 13, s40
    v_add_u32 v5, v5, v7
    v_add_u32 v6, 0xffffe400, v5
    v_lshlrev_b32 v8, 2, v7
    s_lshl_b32 s40, s24, {GSH}
    s_lshl_b32 s42, s25, {LSB+6}
    s_add_u32 s40, s40, s42
    v_and_b32 v11, 7, v0
    v_lshl_add_u32 v11, v11, 4, s40
    v_lshrrev_b32 v12, 3, v0
    v_lshl_add_u32 v11, v12, {LSB}, v11
    v_add_u32 v12, {32 << LSB}, v11
    s_mov_b32 s59, {SENT}
    v_mov_b32 v124, s59
    v_mov_b32 v125, s59
    v_mov_b64 v[126:127], v[124:125]
    s_mov_b32 s34, 0x200000
    s_mov_b32 s35, 0x20000
    s_mul_i32 s42, s25, 43
    s_lshr_b32 s42, s42, 7
    s_mul_i32 s42, s42, 3
    s_sub_u32 s42, s25, s42
    s_lshl2_add_u32 s42, s42, s26
    s_lshl_b32 s40, s24, 5
    s_add_u32 s42, s42, s40
    s_lshl_b32 s42, s42, 7
    s_add_u32 s42, s42, {CF}
    v_lshl_add_u32 v13, v15, 5, s42
    s_waitcnt lgkmcnt(0)
    """)
    tK = []; tw_ = []
    def kload(j):
        if j == 0: tw_.append(vm.issue(f"global_load_dwordx4 {vr(W0,4)}, v8, s[10:11]")); stamp(1)
        if j == 10: vm.issue(f"global_load_dword v{DD}, v7, s[14:15]")
        if j < 3: tK.append(vm.issue(f"buffer_load_dword v{K0+j}, v6, s[32:35], 0 offen offset:{1024*j}"))
        else: tK.append(vm.issue(f"global_load_dword v{K0+j}, v5, s[6:7] offset:{1024*(j-3)-4096}"))
    if cfg.kfirst: a("s_mov_b64 s[32:33], s[6:7]")
    for j in range(cfg.kfirst): kload(j)
    vm.issue("global_load_lds_dwordx4 v9, s[16:17]")
    a(f"s_add_u32 m0, s43, {XT+1024}\ns_mov_b64 s[32:33], s[6:7]")
    vm.issue("global_load_lds_dwordx4 v10, s[16:17]")
    if cfg.b0pos == 0: a("s_barrier")
    tP = vm.issue(f"global_load_dword v34, v13, s[22:23]")
    a(XSEL)
    vm.issue(f"global_store_dwordx4 v11, v[124:127], {XBASE}")
    tS = vm.issue(f"global_store_dwordx4 v12, v[124:127], {XBASE}")
    a(f"""
    s_add_u32 s44, s22, {FE}
    s_addc_u32 s45, s23, 0
    s_load_dword s27, s[44:45], 0
    {"s_barrier" if cfg.b0pos == 1 else ""}
    """)
    for j in range(cfg.kfirst, 11): kload(j)
    tW = tw_[0]
    tV = [vm.issue(f"global_load_dword v{V0+j}, v5, s[8:9] offset:{1024*j-4096}") for j in range(8)]
    if cfg.bi: a("s_barrier")
    a(".sec conv2 jump")
    if cfg.conv_prio: a(f"s_setprio {cfg.conv_prio}")
    a(f"""
    s_mov_b32 s58, 0
    {XCC}
    s_lshl_b32 s42, s24, 12
    s_add_u32 s42, s42, {CF}
    s_add_u32 s46, s22, s42
    s_addc_u32 s47, s23, 0
    s_mov_b64 s[36:37], {XBASE}
    s_mov_b64 s[38:39], {XBASE}
    v_mov_b64 v[36:37], 0
    v_mov_b64 v[38:39], 0
    v_and_b32 v9, 1, v3
    v_mul_u32_u24 v9, {XIS}, v9
    v_lshl_add_u32 v9, v4, 4, v9
    v_add_u32 v9, {XI}, v9
    v_lshrrev_b32 v10, 1, v1
    v_mul_u32_u24 v10, {HCS}, v10
    v_and_b32 v11, 1, v0
    v_lshl_add_u32 v10, v11, 4, v10
    v_cmp_gt_u32 vcc, 64, v0
    v_cndmask_b32 v9, v10, v9, vcc
    v_and_b32 v10, 7, v0
    v_lshlrev_b32 v10, 4, v10
    v_add_u32 v10, {FL}, v10
    v_cmp_gt_u32 vcc, 128, v0
    v_cndmask_b32 v9, v10, v9, vcc
    ds_write_b128 v9, v[36:39]
    s_lshl_b32 s42, s25, 2
    v_lshl_add_u32 v10, v1, 7, s42
    s_waitcnt lgkmcnt(0)
    {TAG}
    s_xor_b32 s29, s27, s28
    v_mov_b32 v33, s29
    s_mov_b64 exec, {(1 << cfg.nrep) - 1}
    s_waitcnt {vm.cnt(tS)}
    s_barrier
    """)
    vm.issue(f"global_store_dword v10, v33, s[46:47] offset:{CF_KV}")
    a("s_mov_b64 exec, -1")
    if cfg.pollpos == 0:
        a("v_lshlrev_b32 v11, 2, v4")
        if cfg.nrep > 1: a("v_lshl_add_u32 v11, v2, 7, v11")
        tP = vm.issue(f"global_load_dword v34, v11, s[46:47] offset:{CF_KV} sc1")
    stamp(2)
    a(gather_addr(14, 13))
    a(f"""
    s_lshr_b32 s48, s26, 1
    s_and_b32 s49, s26, 1
    s_lshl2_add_u32 s41, s25, s26
    s_lshl_b32 s41, s41, {LSB+4}
    s_add_u32 s41, s41, s40
    v_lshlrev_b32 v25, 10, v3
    v_lshl_add_u32 v25, v4, 2, v25
    v_lshlrev_b32 v11, 2, v4
    v_bfe_u32 v3, v0, 4, 2
    v_bfe_u32 v28, v0, 2, 4
    v_lshl_add_u32 v28, v28, {LSB}, s41
    v_and_b32 v9, 3, v0
    v_lshl_add_u32 v28, v9, 5, v28
    v_lshrrev_b32 v9, 1, v1
    v_lshl_add_u32 v9, v9, {LSB}, s41
    v_and_b32 v13, 1, v0
    v_lshl_add_u32 v9, v13, 6, v9
    v_bfe_u32 v13, v0, 4, 1
    v_lshl_add_u32 v9, v13, 5, v9
    v_bfe_u32 v12, v0, 5, 1
    v_lshl_add_u32 v9, v12, 4, v9
    v_add_u32 v29, {8 << LSB}, v9
    v_and_b32 v2, 63, v0
    v_and_b32 v13, 3, v0
    v_sub_u32 v12, 3, v13
    v_mul_u32_u24 v12, {HCS}, v12
    v_or_b32 v13, 3, v1
    v_lshl_add_u32 v12, v13, 1, v12
    v_lshl_add_u32 v12, v3, 4, v12
    s_mul_i32 s42, s48, {HCH}
    s_lshl_b32 s41, s49, 8
    s_add_u32 s42, s42, s41
    s_add_u32 s42, s42, {HC+2}
    v_add_u32 v12, s42, v12
    s_mul_i32 s42, s48, {XIS}
    s_sub_u32 s42, s42, s41
    s_add_u32 s42, s42, {XI+512-176}
    v_lshlrev_b32 v13, 1, v1
    v_sub_u32 v13, v13, v3
    v_lshl_add_u32 v13, v13, 4, s42
    v_bfe_u32 v24, v0, 1, 1
    v_mul_u32_u24 v24, {XIS}, v24
    v_bfe_u32 v26, v0, 2, 4
    v_lshl_add_u32 v24, v26, 5, v24
    v_and_b32 v26, 1, v0
    v_lshl_add_u32 v24, v26, 4, v24
    s_lshl_b32 s41, s26, 10
    v_add_u32 v24, s41, v24
    s_mov_b32 s52, 0
    s_mov_b32 s53, 0
    s_lshl_b32 s41, s26, 12
    s_add_u32 s41, s41, {PX}
    v_lshl_add_u32 v8, v2, 4, s41
    s_xor_b32 s41, s26, 1
    s_lshl_b32 s41, s41, 12
    s_add_u32 s41, s41, {PX}
    v_lshl_add_u32 v6, v2, 4, s41
    s_lshl2_add_u32 s41, s26, {FL}
    v_mov_b32 v10, s41
    v_and_b32 v4, 7, v0
    {"v_min_u32 v4, 4, v4" if cfg.lead2 else ""}
    v_lshlrev_b32 v4, 2, v4
    v_add_u32 v4, {FL}, v4
    s_xor_b32 s41, s24, {cfg.xs}
    s_lshr_b32 s41, s41, 1
    s_lshl2_add_u32 s41, {"s41" if cfg.own else 0}, {FL+32}
    v_mov_b32 v26, s41
    v_mov_b32 v35, 1
    v_mov_b32 v30, s29
    v_mov_b32 v31, s29
    s_mov_b32 s50, 0
    """)
    WP, KF, VF, AC = 152, 160, 184, 200
    vm.wait(tW)
    for j in range(4):
        for ch in range(2):
            src = W0 + 2*ch + (j >> 1)
            if j & 1: a(f"v_and_b32 v{WP+2*j+ch}, 0xffff0000, v{src}")
            else:     a(f"v_lshlrev_b32 v{WP+2*j+ch}, 16, v{src}")
    def rows(ns):
        for j in (3, 2, 1, 0):
            for n in ns:
                k = vr(KF + 2*(n + 3 - j), 2); w = vr(WP + 2*j, 2); d = vr(AC + 2*n, 2)
                if j == 3: a(f"v_pk_mul_f32 {d}, {k}, {w}")
                else:      a(f"v_pk_fma_f32 {d}, {k}, {w}, {d}")
    vm.wait(tK[6])
    for n in range(7): unp(KF+2*n, K0+n)
    rows(range(4))
    vm.wait(tK[10])
    stamp(3)
    for n in range(7, 11): unp(KF+2*n, K0+n)
    rows(range(4, 8))
    vm.wait(tV[3])
    SP = f"s_load_dwordx16 s[4:19], s[46:47], {CF_KV}\ns_load_dwordx16 s[84:99], s[46:47], {CF_KV+64}"
    if cfg.spoll == 1: a(SP)
    for n in range(4): unp(VF+2*n, V0+n)
    for n in range(4): a(f"v_pk_mul_f32 {vr(AC+2*n,2)}, {vr(AC+2*n,2)}, {vr(VF+2*n,2)}")
    for q in (2, 3):
        for ch in range(2):
            a(f"v_cvt_pk_bf16_f32 v{KVP+4*ch+q}, v{AC+2*(7-2*q)+ch}, v{AC+2*(6-2*q)+ch}")
    if cfg.pollpos == 1: tP = vm.issue(f"global_load_dword v34, v11, s[46:47] offset:{CF_KV} sc1")
    for q in (2, 3): a(f"v_permlane16_swap_b32 v{KVP+q}, v{KVP+4+q}")
    vm.wait(tV[7])
    if cfg.spoll == 2: a(SP)
    for n in range(4, 8): unp(VF+2*n, V0+n)
    for n in range(4, 8): a(f"v_pk_mul_f32 {vr(AC+2*n,2)}, {vr(AC+2*n,2)}, {vr(VF+2*n,2)}")
    for q in (0, 1):
        for ch in range(2):
            a(f"v_cvt_pk_bf16_f32 v{KVP+4*ch+q}, v{AC+2*(7-2*q)+ch}, v{AC+2*(6-2*q)+ch}")
    for q in (0, 1): a(f"v_permlane16_swap_b32 v{KVP+q}, v{KVP+4+q}")
    for n in range(2):
        vm.issue(f"global_store_dwordx4 v{(9, 29)[n]}, {vr(KVP+4*n,4)}, s[36:37]")
    if cfg.ppos == 6: vm.issue(f"global_load_dword v28, v28, s[36:37] {cfg.pflag}")
    if cfg.spoll == 3: a(SP)
    stamp(4)
    if cfg.spoll:
        a("L_look:\ns_waitcnt lgkmcnt(0)")
        prs = list(range(4, 20, 2)) + list(range(84, 100, 2))
        if cfg.lchk == 0:
            for i in prs: a(f"v_cmpx_eq_u64 vcc, s[{i}:{i+1}], v[30:31]")
            a("s_cbranch_vccnz L_looked\ns_mov_b64 exec, -1")
        else:
            a("s_and_b64 s[40:41], s[4:5], s[6:7]\ns_or_b64 s[42:43], s[4:5], s[6:7]")
            for i in prs[2:]: a(f"s_and_b64 s[40:41], s[40:41], s[{i}:{i+1}]\ns_or_b64 s[42:43], s[42:43], s[{i}:{i+1}]")
            a("""
            s_and_b32 s40, s40, s41
            s_or_b32 s41, s42, s43
            s_mov_b32 s28, s29
            s_cmp_eq_u64 s[40:41], s[28:29]
            s_cbranch_scc1 L_looked
            """)
        a(f"""
        s_add_u32 s50, s50, 128
        s_cmp_ge_u32 s50, {128*cfg.nrep}
        s_cbranch_scc1 L_kvretry
        {f"s_sleep {cfg.repsleep}" if cfg.repsleep else ""}
        s_add_u32 s41, s50, 64
        s_load_dwordx16 s[4:19], s[46:47], s50
        s_load_dwordx16 s[84:99], s[46:47], s41
        s_branch L_look
        L_looked:
        """)
    XL = 100
    a(f"""
    L_kvok:
    """)
    GL = f"""
    global_load_dwordx4 {vr(XL,4)}, v14, s[36:37] sc1
    global_load_dwordx4 {vr(XL+4,4)}, v{14 if 'g' in cfg.hack else 15}, s[36:37] sc1
    """
    if cfg.gpos != 1: a(GL)
    PL = f"global_load_dword v28, v28, s[36:37] {cfg.pflag}"
    if cfg.ppos == 7: a(PL)
    stamp(5)
    TR = [16, 18, 20, 22, 116, 118, 124, 126]
    if cfg.tpre:
        for q in range(4): a(f"v_permlane16_swap_b32 v{KVP+q}, v{KVP+4+q}")
        unp(36, DD)
        for ch in range(2):
            for q in range(4):
                a(f"v_lshlrev_b32 v{40+2*(7-2*q)+ch}, 16, v{KVP+4*ch+q}\nv_and_b32 v{40+2*(6-2*q)+ch}, 0xffff0000, v{KVP+4*ch+q}")
        for n in range(8): a(f"v_pk_mul_f32 {vr(TR[n],2)}, {vr(40+2*n,2)}, v[36:37]")
        a(f"""
        v_lshlrev_b32 v30, 1, v5
        v_sub_u32 v30, v30, v7
        v_add_u32 v30, 0xfffff000, v30
        v_add_u32 v31, 8192, v30
        """)
    if cfg.ppos == 8: a(PL)
    a(f"""
    s_cmp_lg_u32 s49, 0
    s_cbranch_scc1 L_convB
    .sec varA jump
    """)
    def sentinel_check(R, T, step=1):
        idx = list(range(0, 8, step))
        if cfg.chk == 0:
            for i in idx: a(f"v_cmpx_ne_u32 vcc, s59, v{R+i}")
            a("s_not_b64 exec, vcc")
        elif cfg.chk == 1:
            for n, i in enumerate(idx): a(f"v_cmp_eq_u32 s[{4+2*n}:{5+2*n}], s59, v{R+i}")
            w = len(idx)
            while w > 2:
                w //= 2
                for n in range(w): a(f"s_or_b64 s[{4+2*n}:{5+2*n}], s[{4+2*n}:{5+2*n}], s[{4+2*(n+w)}:{5+2*(n+w)}]")
            a("s_or_b64 exec, s[4:5], s[6:7]")
        else:
            for n, i in enumerate(idx): a(f"v_xor_b32 v{T+n}, s59, v{R+i}")
            if step == 1:
                a(f"v_min3_u32 v{T}, v{T}, v{T+1}, v{T+2}\nv_min3_u32 v{T+3}, v{T+3}, v{T+4}, v{T+5}\nv_min3_u32 v{T}, v{T}, v{T+6}, v{T+7}\nv_min_u32 v{T}, v{T}, v{T+3}")
            else:
                a(f"v_min3_u32 v{T}, v{T}, v{T+1}, v{T+2}\nv_min_u32 v{T}, v{T}, v{T+3}")
            a(f"v_cmp_eq_u32 vcc, 0, v{T}\ns_and_b64 exec, vcc, vcc")
    slow_stubs = []
    def conv_variant(own, foreign, tg):
        a(f"""
        s_lshl_b32 s42, s48, 5
        s_add_u32 s41, s51, s42
        v_lshl_add_u32 v27, v1, {LSB+4}, s41
        v_lshl_add_u32 v27, v3, 3, v27
        v_add_u32 v{YA}, {own[0] << (LSB+8)}, v27
        v_add_u32 v{YA+1}, {own[1] << (LSB+8)}, v27
        v_add_u32 v{YA+2}, {own[2] << (LSB+8)}, v27
        v_add_u32 v{YA+3}, {own[3] << (LSB+8)}, v27
        s_mul_i32 s54, s53, {CF_SLOW}
        {"s_mov_b32 s40, 0" if cfg.lead2 else "s_lshr_b32 s40, s25, 3"}
        s_lshl_b32 s40, s40, 7
        s_add_u32 s40, s40, s54
        v_add_u32 v11, s40, v11
        s_mov_b32 s56, 0xffff
        s_mov_b32 s57, 0xffff
        {PL if cfg.ppos == 9 else ""}
        s_barrier
        """)
        seq = []
        for ph, tiles in ((0, foreign), (1, own)):
            for v in range(max(tiles) + 1):
                for rr in range(4):
                    seq.append((ph, v, rr, [j for j in tiles if j >= v]))
        if cfg.solo:
            big = max(own); late_ = []
            for n, (ph, v, rr, tiles) in enumerate(seq):
                if ph == 1 and v >= cfg.solo - (7 - big):
                    late_.append((ph, v, rr, [big])); seq[n] = (ph, v, rr, [j for j in tiles if j != big])
            seq = [x for x in seq if x[3]] + late_
        aorder = []
        for (ph, v, rr, tiles) in seq:
            for j in tiles:
                if (j - v, rr) not in aorder: aorder.append((j - v, rr))
        areads = []
        for (u, rr) in aorder:
            f = AF + 4*(4*u + rr)
            areads.append(((u, rr, 0), f"ds_read_b64 {vr(f,2)}, v12 offset:{512*u+64*rr}"))
            areads.append(((u, rr, 1), f"ds_read_b64 {vr(f+2,2)}, v12 offset:{512*u+64*rr+8}"))
        lg = Lgkm(a)
        atok = {}
        def ard(n):
            for _ in range(n):
                if areads:
                    k, t = areads.pop(0)
                    atok[k] = lg.issue(t)
        if cfg.xdiag: stamp(13)
        ard(cfg.gdel)
        if cfg.gpos: a(GL)
        ard(cfg.apre - cfg.gdel)
        if cfg.xdiag:
            stamp(14); a("s_waitcnt vmcnt(0)"); stamp(15)
        XW = f"ds_write_b128 v24, {vr(XL,4)} offset:{XI+512}\nds_write_b128 v24, {vr(XL+4,4)} offset:{XI+512+512}"
        a(f"""
        v_add_u32 v25, {XT}, v25
        L_xpoll{tg}:
        s_waitcnt vmcnt(0)
        {XW if cfg.wfirst else ""}
        """)
        if 'x' in cfg.hack: a(f"s_branch L_xok{tg}")
        sentinel_check(XL, 40, cfg.ychk)
        a(f"""
        s_cbranch_scc0 L_xok{tg}
        {"s_waitcnt lgkmcnt(0)" if cfg.wfirst else ""}
        {GL}
        s_mov_b64 exec, -1
        {BOUND}
        s_branch L_xpoll{tg}
        L_xok{tg}:
        s_mov_b64 exec, -1
        """)
        stamp(6)
        a(f"{'' if cfg.wfirst else XW}\ns_waitcnt lgkmcnt(0)")
        if cfg.xdiag == 2: a("s_mul_i32 s86, s58, 100\ns_add_u32 s86, s86, s60")
        lg.done = lg.n
        if 'g' in cfg.hack: a("global_load_dwordx4 v[116:119], v15, s[36:37] sc1")
        a("s_barrier")
        stamp(7)
        vm = Vm(a)
        st = {}
        def accreg(ph, j):
            tiles = own if ph else foreign
            return ACC + 16*ph + 4*tiles.index(j)
        mf = []
        first, last, done = {}, {}, {}
        deferred = []
        for i, (ph, v, rr, tiles) in enumerate(seq):
            if ph == 1 and own == S1 and v == 6 and deferred:
                mf += deferred; deferred = []
            for j in tiles:
                if ph == 1 and own == S1 and j == 6 and v in (4, 5) and not cfg.solo: deferred.append((i, ph, j, j - v, rr))
                else: mf.append((i, ph, j, j - v, rr))
        for n, (i, ph, j, u, rr) in enumerate(mf):
            first.setdefault(i, n); last[i] = n
            done[ph, j] = n
        afirst = {}
        for n, (i, ph, j, u, rr) in enumerate(mf): afirst.setdefault((u, rr), n)
        tok = {}
        jobs = []
        def bread(i):
            ph, v, rr, _ = seq[i]
            def f():
                if 'b' in cfg.hack and i >= NB and i % 2: tok[i] = 0
                else: tok[i] = lg.issue(f"ds_read_b128 {vr(BR+4*(i % NB),4)}, v13 offset:{512*v+64*(3-rr)}")
            return f
        npre = sum(1 for i in range(len(seq)) if first[i] <= cfg.lead)
        for i in range(npre): bread(i)()
        for i in range(npre, len(seq)):
            jobs.append([first[i] - cfg.lead, last[i - NB] if i >= NB else 0, bread(i)])
        for k, t in areads:
            def f(k=k, t=t): atok[k] = lg.issue(t)
            jobs.append([afirst[k[:2]] - cfg.lead, 0, f])
        for j in foreign:
            def f(j=j): lg.issue(f"ds_write_b128 v8, {vr(accreg(0,j),4)} offset:{1024*foreign.index(j)}")
            jobs.append([done[0, j] + 6, done[0, j] + 5, f])
        jobs.append([done[0, max(foreign)] + 7.5, done[0, max(foreign)] + 7, lambda: lg.issue("ds_write_b32 v10, v35")])
        pxr = ["ds_read_b32 v34, v4"] + [f"ds_read_b128 {vr(ACC+4*t,4)}, v6 offset:{1024*t}" for t in range(4)]
        for n, x in enumerate(pxr):
            def f(x=x): st["px"] = lg.issue(x)
            jobs.append([cfg.px_at + n, cfg.px_at + n, f])
        if cfg.gate: jobs.append([cfg.gate, cfg.gate, lambda: lg.issue("ds_write_b32 v10, v35 offset:64")])
        Q0 = 248
        qreads = ["ds_read_b32 v28, v26"] + [f"ds_read2_b32 {vr(Q0+2*i,2)}, v25 offset0:{64*i} offset1:{64*i+32}" for i in range(4)]
        for n, x in enumerate(qreads):
            jobs.append([200 + n, 143, lambda x=x: lg.issue(x)])
        vjobs = []
        def chk_px():
            lg.wait(st["px"])
            a(f"""
            v_cmp_ne_u32 vcc, 1, v34
            s_cbranch_vccnz L_pxretry{tg}
            L_pxok{tg}:
            """)
            slow_stubs.append(f"L_pxretry{tg}:\n" + BOUND + "\n".join(pxr) + f"""
            s_waitcnt lgkmcnt(0)
            v_cmp_ne_u32 vcc, 1, v34
            s_cbranch_vccnz L_pxretry{tg}
            s_branch L_pxok{tg}
            """)
        vjobs.append([cfg.px_at + 4 + cfg.lead, chk_px])
        ystores = []
        for t, j in enumerate(own):
            r = accreg(1, j); p = ACC + 4*t
            e = done[1, j] + 5
            vjobs.append([e, lambda p=p, r=r: a(f"v_add_f32 v{p}, v{p}, v{r}\nv_add_f32 v{p+1}, v{p+1}, v{r+1}")])
            vjobs.append([e, lambda p=p, r=r: a(f"v_add_f32 v{p+2}, v{p+2}, v{r+2}\nv_add_f32 v{p+3}, v{p+3}, v{r+3}")])
            if t >= 4 - cfg.yhalf:
                vjobs.append([e, lambda p=p, r=r: a(f"v_cvt_pk_bf16_f32 v{r}, v{p}, v{p+1}\nv_cvt_pk_bf16_f32 v{r+2}, v{p}, v{p+1}")])
                vjobs.append([e, lambda p=p, r=r: a(f"v_cvt_pk_bf16_f32 v{r+1}, v{p+2}, v{p+3}\nv_cvt_pk_bf16_f32 v{r+3}, v{p+2}, v{p+3}")])
                vjobs.append([e, lambda r=r: a(f"v_permlane16_swap_b32 v{r}, v{r+2}\nv_permlane16_swap_b32 v{r+1}, v{r+3}")])
                ystores.append(f"s_mov_b64 exec, s[56:57]\nglobal_store_dwordx4 v{YA+t}, {vr(r,4)}")
                vjobs.append([e, lambda x=ystores[-1]: vm.issue(f"{x}, s[38:39] {cfg.xflag}\ns_mov_b64 exec, -1")])
            else:
                vjobs.append([e, lambda p=p: a(f"v_cvt_pk_bf16_f32 v{p}, v{p}, v{p+1}\nv_cvt_pk_bf16_f32 v{p+1}, v{p+2}, v{p+3}")])
                ystores.append(f"global_store_dwordx2 v{YA+t}, {vr(p,2)}")
                vjobs.append([e, lambda x=ystores[-1]: vm.issue(f"{x}, s[38:39] {cfg.xflag}")])
            if t == 0:
                def clrpoll(): st["poll"] = vm.issue(f"global_load_dword v14, v11, s[46:47] offset:{CF_Y} sc1")
                vjobs.append([cfg.poll_at, clrpoll])
        issued_at = {}
        def need(n):
            i, ph, j, u, rr = mf[n]
            return max(tok[i], atok[(u, rr, 1)])
        def slack(n):
            dl = sorted(x[0] for x in jobs)
            return all(d > n + k for k, d in enumerate(dl))
        started = set()
        late = 0
        lg.wait(need(0))
        for n, (i, ph, j, u, rr) in enumerate(mf):
            d = vr(accreg(ph, j), 4)
            c = d if (ph, j) in started else "0"
            started.add((ph, j))
            if not ('m' in cfg.hack and n % 6 == 5 and c != "0"):
                a(f"v_mfma_f32_16x16x32_bf16 {d}, {vr(AF+4*(4*u+rr),4)}, {vr(BR+4*(i % NB),4)}, {c}")
            if n + 1 in (36, 72, 108) and not cfg.xdiag: stamp({36: 13, 72: 14, 108: 15}[n + 1])
            issued_at[n] = lg.n
            nxt = mf[n + 1] if n + 1 < len(mf) else None
            ready = sorted([x for x in jobs if x[1] <= n], key=lambda x: x[0])
            mustwait = nxt is not None and nxt[0] in tok and (nxt[3], nxt[4], 1) in atok and need(n + 1) > lg.done
            if vjobs and vjobs[0][0] <= n and not mustwait and (slack(n) or not ready):
                vjobs.pop(0)[1]()
            elif ready:
                x = ready[0]
                if x[0] < n: late += 1
                jobs.remove(x); x[2]()
            elif vjobs and n < vjobs[0][0] <= n + 5 and not mustwait: a("s_nop 0")
            if nxt is not None:
                while nxt[0] not in tok or (nxt[3], nxt[4], 1) not in atok:
                    x = sorted([x for x in jobs if x[1] <= n], key=lambda x: x[0])[0]
                    jobs.remove(x); x[2](); late += 1
                if need(n + 1) > lg.done:
                    lg.wait(max(need(n + 1), issued_at.get(n - cfg.lead + 2, 0)))
        for x in sorted(jobs, key=lambda x: x[0]): x[2]()
        rest_v = len(vjobs)
        for x in vjobs: x[1]()
        print(f"variant {tg}: late LDS jobs {late}, vector jobs after the stream {rest_v}")
        a(f"""
        s_cmp_lg_u32 s53, 0
        s_cbranch_scc1 L_yslow{tg}
        L_yback{tg}:
        """)
        slow_stubs.append(f"L_yslow{tg}:\n" + "\n".join(x + ", s[36:37] sc1" for x in ystores) + f"\ns_mov_b64 exec, -1\ns_waitcnt vmcnt(0)\ns_branch L_yback{tg}")
        stamp(8)
        QF, QT = 128, 144
        YL, YF = 72, 80
        vm.wait(st["poll"])
        a(f"""
        v_cmp_ne_u32 vcc, s29, v14
        s_cbranch_vccnz L_clrretry{tg}
        L_clrok{tg}:
        """)
        slow_stubs.append(f"""
        L_clrretry{tg}:
        {BOUND}
        global_load_dword v14, v11, s[46:47] offset:{CF_Y} sc1
        s_waitcnt vmcnt(0)
        v_cmp_ne_u32 vcc, s29, v14
        s_cbranch_vccnz L_clrretry{tg}
        s_branch L_clrok{tg}
        """)
        stamp(9)
        YLD = f"""
        global_load_dwordx4 {vr(YL,4)}, v9, s[36:37] sc1
        global_load_dwordx4 {vr(YL+4,4)}, v29, s[36:37] sc1
        """
        if not cfg.tpre:
            for q in range(4): a(f"v_permlane16_swap_b32 v{KVP+q}, v{KVP+4+q}")
            unp(36, DD)
            for ch in range(2):
                for q in range(4):
                    a(f"v_lshlrev_b32 v{QT+2*(7-2*q)+ch}, 16, v{KVP+4*ch+q}\nv_and_b32 v{QT+2*(6-2*q)+ch}, 0xffff0000, v{KVP+4*ch+q}")
        if cfg.ypos == 0: a(YLD)
        if not cfg.tpre: a("""
        v_lshlrev_b32 v30, 1, v5
        v_sub_u32 v30, v30, v7
        v_add_u32 v30, 0xfffff000, v30
        v_add_u32 v31, 8192, v30
        """)
        a(f"""
        s_waitcnt lgkmcnt(0)
        v_cmp_ne_u32 vcc, 1, v28
        s_cbranch_vccnz L_qretry{tg}
        L_qok{tg}:
        """)
        slow_stubs.append(f"L_qretry{tg}:\n" + BOUND + "\n".join(qreads) + f"""
        s_waitcnt lgkmcnt(0)
        v_cmp_ne_u32 vcc, 1, v28
        s_cbranch_vccnz L_qretry{tg}
        s_branch L_qok{tg}
        """)
        for n in range(8): unp(QF+2*n, Q0+n)
        if cfg.ypos == 1: a(YLD)
        if not cfg.tpre:
            for n in range(8): a(f"v_pk_mul_f32 {vr(QT+2*n,2)}, {vr(QT+2*n,2)}, v[36:37]")
        for n in range(8): a(f"v_pk_mul_f32 {vr(QT+2*n,2)}, {vr(TR[n] if cfg.tpre else QT+2*n,2)}, {vr(QF+2*n,2)}")
        if cfg.ypos == 2: a(YLD)
        stamp(10)
        a(f"""
        L_ypoll{tg}:
        s_waitcnt vmcnt(0)
        """)
        if 'y' in cfg.hack: a(f"s_branch L_yok{tg}")
        sentinel_check(YL, 100, cfg.ychk)
        a(f"""
        s_cbranch_scc0 L_yok{tg}
        {YLD}
        s_mov_b64 exec, -1
        {BOUND}
        s_branch L_ypoll{tg}
        L_yok{tg}:
        s_mov_b64 exec, -1
        s_nop 0
        """)
        stamp(11)
        for q in range(4): a(f"v_permlane16_swap_b32 v{YL+q}, v{YL+4+q}")
        for q in range(4):
            a(f"v_lshlrev_b32 v{YF+4*q}, 16, v{YL+q}\nv_and_b32 v{YF+4*q+2}, 0xffff0000, v{YL+q}")
            a(f"v_lshlrev_b32 v{YF+4*q+1}, 16, v{YL+4+q}\nv_and_b32 v{YF+4*q+3}, 0xffff0000, v{YL+4+q}")
            for n in (2*q, 2*q+1):
                a(f"v_pk_fma_f32 {vr(YF+2*n,2)}, {vr(YF+2*n,2)}, {vr(QF+2*n,2)}, {vr(QT+2*n,2)}")
            for n in (2*q, 2*q+1):
                a(f"v_cvt_pk_bf16_f32 v{YF+2*n}, v{YF+2*n}, v{YF+2*n+1}")
            for n in (2*q, 2*q+1):
                if 'o' not in cfg.hack: a(f"global_store_dword {'v30' if n < 4 else 'v31'}, v{YF+2*n}, s[20:21] offset:{2048*(n&3)-4096} {cfg.out_flag}")
        stamp_out(12)
        a("s_endpgm")
        for x in slow_stubs: a(x)
        slow_stubs.clear()
    conv_variant(S0, S1, "A")
    a(".sec varB\nL_convB:")
    conv_variant(S1, S0, "B")
    C1, BD, A1 = 16, 48, 80
    HD, HE, T = 128, 136, 140
    C0, CS1, TWC, TWS, CS2 = 192, 200, 208, 216, 224
    rFS, rLZ, rFV, rCL, rQ, rSE, rLF, rMD, rZA, rGZ, rGV, rZW, rZR, rZS = 108, 109, 110, 112, 114, 116, 120, 121, 122, 123, 124, 125, 126, 127
    rZR2 = 249
    rO, rZF, rONE, rLP, rP, rH, rE = 240, 242, 243, 244, 246, 247, 248
    m32 = cfg.z32 and not cfg.zx4
    HI, LO = ('v5', 'v6') if m32 else ('v9', 'v1')
    a(".sec aux1\nL_fnet:")
    if cfg.b0at == 0: a("s_barrier")
    role[0] = 'f'
    EPO = f"s_waitcnt lgkmcnt(0)\ns_add_u32 s44, s22, {FE}\ns_addc_u32 s45, s23, 0\ns_load_dword s27, s[44:45], 0"
    vm = Vm(a)
    stamp(1)
    if cfg.fnet_prio: a(f"s_setprio {cfg.fnet_prio}")
    a(f"""
    v_and_b32 v0, 255, v0
    s_and_b32 s26, s26, 3
    v_and_b32 v2, 3, v2
    s_mov_b32 s58, 0
    s_lshr_b32 s57, s25, 1
    {"s_add_u32 s40, s24, s57" if cfg.xrot else f"s_xor_b32 s40, s24, {cfg.xs}"}
    s_and_b32 s40, s40, 7
    s_and_b32 s56, s25, 1
    s_lshl1_add_u32 s56, s40, s56
    {EPO if cfg.b0at == 0 else ""}
    v_bfe_u32 v3, v0, 1, 4
    v_lshl_add_u32 v3, v2, 4, v3
    v_and_b32 v4, 1, v0
    v_bfe_u32 v5, v0, 5, 1
    v_mul_u32_u24 v6, s57, v3
    v_lshl_add_u32 v6, v4, 9, v6
    v_lshlrev_b32 v7, 4, v3
    v_and_b32 v8, 0xdf, v0
    v_cmp_eq_u32 vcc, 1, v8
    v_mov_b32 v9, 0x400
    v_cndmask_b32 v6, v6, 0, vcc
    v_cndmask_b32 v7, v7, v9, vcc
    v_lshlrev_b32 v9, 3, v5
    v_mad_u32_u24 v6, v9, v7, v6
    v_cvt_f32_u32 v6, v6
    v_cvt_f32_u32 v7, v7
    v_mul_f32 v10, {f32(1/2048)}, v6
    v_mul_f32 v7, {f32(1/2048)}, v7
    v_add_f32 v11, v10, v7
    v_add_f32 v12, v7, v7
    v_mov_b32 v13, v12
    v_mul_f32 v14, {f32(10.0)}, v7
    v_mov_b32 v15, v14
    v_and_b32 v8, 2, v0
    v_mul_u32_u24 v8, 0x4000, v8
    v_lshl_or_b32 v8, v8, 16, v8
    """)
    for ks in range(4):
        for i2 in range(4):
            a(f"v_cos_f32 v100, v10\nv_cos_f32 v101, v11")
            if not (ks == 3 and i2 == 3):
                a(f"v_pk_add_f32 v[10:11], v[10:11], {'v[12:13]' if i2 < 3 else 'v[14:15]'}")
            a(f"v_cvt_pk_bf16_f32 v{C1+4*ks+i2}, v100, v101")
            if 4*ks + i2 + 1 == cfg.b0at % 100: a(("s_barrier\n" if cfg.b0at < 100 and cfg.b0pos < 2 else "") + EPO)
    a(f"""
    v_and_b32 v6, 31, v0
    v_bfe_u32 v9, v0, 4, 2
    v_bfe_u32 v7, v0, 2, 2
    v_lshl_add_u32 v3, v5, 3, v7
    v_lshlrev_b32 v3, 6, v3
    v_and_b32 v10, 1, v9
    v_lshl_add_u32 v3, v10, 5, v3
    v_and_b32 v10, 3, v0
    v_lshl_add_u32 v3, v10, 3, v3
    v_add_u32 v3, {XT}, v3
    v_lshlrev_b32 v{rH}, 4, v0
    v_add_u32 v{rE}, -8, v{rH}
    s_lshl_b32 s34, s25, 13
    s_lshl_b32 s35, s24, 18
    s_add_u32 s34, s34, s35
    s_add_u32 s35, s34, 4096
    s_mov_b64 s[36:37], s[12:13]
    s_mov_b32 s38, 0x200000
    s_mov_b32 s39, 0x20000
    s_lshl_b32 s42, s24, {GSH}
    s_lshl_b32 s43, s25, {LSB+6}
    s_add_u32 s42, s42, s43
    v_lshrrev_b32 v{rP}, 2, v0
    v_lshl_add_u32 v{rP}, v{rP}, {LSB}, s42
    {XSEL}
    s_mov_b64 s[52:53], {XBASE}
    s_lshl_b32 s42, s26, 19
    s_lshl_b32 s43, s56, 11
    s_add_u32 s42, s42, s43
    """)
    a(f"""
    s_lshl_b32 s43, s57, 7
    s_add_u32 s42, s42, s43
    s_add_u32 s42, s42, {Z1W}
    v_lshl_add_u32 v{rZS}, v6, 2, s42
    """ if cfg.z32 else f"""
    s_and_b32 s43, s57, 3
    s_lshl_b32 s43, s43, 8
    s_add_u32 s42, s42, s43
    s_lshr_b32 s43, s57, 2
    s_lshl_b32 s43, s43, 6
    s_add_u32 s42, s42, s43
    s_add_u32 s42, s42, {Z1W}
    v_lshl_add_u32 v{rZS}, v1, 2, s42
    v_and_b32 v10, 1, v9
    v_lshl_add_u32 v{rZS}, v10, 10, v{rZS}
    """)
    a(f"""
    v_lshl_add_u32 v{rZS}, v5, 16, v{rZS}
    s_lshr_b32 s48, s25, 2
    s_lshl3_add_u32 s48, s24, s48
    s_and_b32 s49, s25, 3
    """)
    def addrs():
        a(gather_addr(rCL, 13))
        a(f"""
        s_lshl_b32 s40, s24, 12
        s_add_u32 s40, s40, {CF}
        s_add_u32 s46, s22, s40
        s_addc_u32 s47, s23, 0
        s_lshl_b32 s42, s26, 7
        s_lshl2_add_u32 s42, s25, s42
        v_mov_b32 v{rFS}, s42
        v_and_b32 v13, 63, v0
        v_lshlrev_b32 v{rLZ}, 3, v13
        v_and_b32 v13, 7, v0
        s_xor_b32 s42, s24, {cfg.xs}
        s_lshl3_add_u32 s42, s25, s42
        s_lshl_b32 s42, s42, {cfg.zfs}
        s_add_u32 s42, s42, {ZF}
        v_lshl_add_u32 v{rGZ}, v13, {8+cfg.zfs}, s42
        {f"v_bfe_u32 v12, v0, 3, 3" if cfg.gzr > 1 else ""}
        {f"v_mul_u32_u24 v12, {(32 // cfg.gzr + 1) << (3+cfg.zfs)}, v12" if cfg.gzr > 1 else ""}
        {f"v_xor_b32 v{rGZ}, v{rGZ}, v12" if cfg.gzr > 1 else ""}
        s_lshl_b32 s42, s24, 5
        s_add_u32 s42, s42, s25
        {"" if cfg.xrot else "s_lshl2_add_u32 s42, s42, s26"}
        s_lshl_b32 s42, s42, {cfg.zfs+(3 if cfg.xrot else 1)}
        s_add_u32 s42, s42, {ZF}
        s_add_u32 s54, s22, s42
        s_addc_u32 s55, s23, 0
        s_lshl_b32 s42, s25, 16
        s_lshl_b32 s43, s24, 7
        s_add_u32 s42, s42, s43
        v_lshl_add_u32 v{rQ}, v13, 4, s42
        {f"v_and_b32 v13, 3, v0" if (not cfg.gate or cfg.gate0) else ""}
        v_lshlrev_b32 v13, 2, v13
        v_add_u32 v{rZF}, {FL+48}, v13
        v_bfe_u32 v13, v0, 3, 3
        v_lshl_add_u32 v{rQ}, v13, 10, v{rQ}
        v_mov_b32 v{rSE}, {SENT}
        v_mov_b32 v{rSE+1}, v{rSE}
        v_mov_b64 v[{rSE+2}:{rSE+3}], v[{rSE}:{rSE+1}]
        s_lshl2_add_u32 s42, s26, {FL}
        v_mov_b32 v{rLF}, s42
        v_mov_b32 v{rONE}, 1
        v_mov_b32 v{rMD}, {FL+80}
        s_lshl2_add_u32 s42, s48, s26
        s_lshl_b32 s42, s42, 13
        s_add_u32 s42, s42, {Z1W+4096}
        """)
        if cfg.zx4: a(f"""
        v_and_b32 v13, 7, v0
        v_lshl_add_u32 v{rZA}, v13, 4, s42
        v_lshl_add_u32 v{rZA}, v9, 9, v{rZA}
        v_bfe_u32 v13, v0, 3, 1
        v_lshl_add_u32 v{rZA}, v13, 11, v{rZA}
        s_mul_i32 s42, s26, 576
        s_add_u32 s42, s42, {ZL}
        v_lshl_add_u32 v{rZW}, v1, 4, s42
        v_mul_u32_u24 v13, 4608, v9
        v_add_u32 v{rZW}, v{rZW}, v13
        s_mul_i32 s42, s26, 4608
        s_add_u32 s42, s42, {ZL}
        v_lshl_add_u32 v{rZR}, v1, 2, s42
        v_mul_u32_u24 v13, 576, v9
        v_add_u32 v{rZR}, v{rZR}, v13
        v_add_u32 v{rZR2}, 2304, v{rZR}
        """)
        else: a(f"""
        {"v_lshl_add_u32 v13, v5, 7, v6" if cfg.z32 else "v_and_b32 v13, 63, v0"}
        v_lshl_add_u32 v{rZA}, v13, 2, s42
        s_lshl_b32 s42, s26, 9
        s_add_u32 s42, s42, {ZL}
        v_lshl_add_u32 v{rZW}, {LO}, 4, s42
        v_lshl_add_u32 v{rZW}, {HI}, 12, v{rZW}
        s_lshl_b32 s42, s26, 12
        s_add_u32 s42, s42, {ZL}
        v_lshl_add_u32 v{rZR}, v1, 4, s42
        v_lshl_add_u32 v{rZR}, v9, 9, v{rZR}
        """)
        a(f"""
        s_lshl2_add_u32 s42, s49, s26
        s_lshl_b32 s42, s42, 7
        s_add_u32 s42, s42, s48
        s_sub_u32 s43, 2048, s42
        s_add_u32 s41, s42, 64
        s_cmp_eq_u32 s48, 0
        s_cselect_b32 s43, s41, s43
        s_lshl_b32 s42, s42, 11
        s_lshl_b32 s43, s43, 11
        v_lshlrev_b32 v13, 5, v1
        v_lshl_add_u32 v13, v9, 3, v13
        v_add_u32 v{rO}, s42, v13
        v_add_u32 v{rO+1}, s43, v13
        s_mov_b32 s33, 0
        s_xor_b32 s42, s24, {cfg.xs}
        {"s_lshr_b32 s32, s42, 1" if cfg.own else "s_mov_b32 s32, 0"}
        s_and_b32 s42, s42, 1
        s_xor_b32 s42, s42, 1
        s_lshl_b32 s42, s42, {cfg.zfs}
        s_cmp_eq_u32 s26, {"s32" if cfg.own else 9}
        s_cselect_b32 s16, s42, 0
        s_cselect_b32 s17, s42, {1 << cfg.zfs}
        """)
    st = {}
    def hloads():
        vm.issue(f"buffer_load_dwordx4 {vr(HD,4)}, v{rH}, s[36:39], s34 offen")
        vm.issue(f"buffer_load_dwordx4 {vr(HD+4,4)}, v{rH}, s[36:39], {'s34' if 'h' in cfg.hack else 's35'} offen")
        a("s_mov_b64 exec, 1")
        vm.issue(f"buffer_load_dwordx2 {vr(HE,2)}, v{rE}, s[36:39], s34 offen")
        st["h"] = vm.issue(f"buffer_load_dwordx2 {vr(HE+2,2)}, v{rE}, s[36:39], s35 offen")
        a("s_mov_b64 exec, -1")
        if cfg.ppos == 1: vm.issue(f"global_load_dword v254, v{rP}, s[52:53] nt")
        stamp(11)
    if cfg.hpos == 4: hloads()
    addrs()
    if cfg.b0at > 100 and cfg.b0pos < 2: a("s_barrier")
    def c0chunk():
        a(f"""
        s_lshl_b32 s42, s49, 2
        v_add_lshl_u32 v7, v7, s42, 1
        v_bfe_u32 v10, v0, 1, 1
        v_and_b32 v12, v10, v4
        """)
        a(f"""
        v_lshlrev_b32 v12, 4, v12
        v_mov_b32 v13, -1
        s_cmp_lg_u32 s48, 0
        s_cbranch_scc1 L_generic
        v_add_u32 v7, v7, v10
        v_lshlrev_b32 v12, 3, v10
        v_lshlrev_b32 v13, 4, v10
        v_mov_b32 v14, 0xffff
        v_lshlrev_b32 v13, v13, v14
        L_generic:
        v_lshl_add_u32 v12, v4, 3, v12
        v_lshlrev_b32 v10, 2, {HI}
        v_mad_u32_u24 v12, v10, v7, v12
        v_lshlrev_b32 v10, 2, v9
        v_cvt_f32_u32 v12, v12
        v_cvt_f32_u32 v7, v7
        v_mul_f32 v12, {f32(1/32)}, v12
        v_mul_f32 v7, {f32(1/32)}, v7
        """)
        for i in range(8 if m32 else 4):
            a(f"v_cos_f32 v100, v12\nv_sin_f32 v101, v12")
            if i % 4 < 3: a("v_add_f32 v12, v12, v7")
            elif i == 3 and m32: a(f"v_fmamk_f32 v12, v7, {f32(5.0)}, v12")
            a(f"v_cvt_pk_bf16_f32 v100, v100, v101\nv_and_b32 v{C0+i}, v100, v13")
        a(f"""
        v_mul_u32_u24 v14, 0x8000, v4
        v_lshl_or_b32 v14, v14, 16, v14
        v_mul_u32_u24 v10, v10, v1
        v_cvt_f32_u32 v10, v10
        v_cvt_f32_u32 v11, v1
        """)

    def cs1():
        a(f"v_mul_f32 v12, {f32(1/16)}, v10\nv_mul_f32 v13, {f32(1/16)}, v11")
        for i in range(4):
            a(f"v_cos_f32 v100, v12\nv_sin_f32 v101, v12")
            if i < 3: a("v_add_f32 v12, v12, v13")
            a(f"v_cvt_pk_bf16_f32 v{CS1+i}, v100, v101\nv_cvt_pk_bf16_f32 v{CS1+4+i}, -v101, v100")
    def tw():
        a(f"v_mul_f32 v12, {f32(1/512)}, v10\nv_mul_f32 v13, {f32(1/512)}, v11")
        for mt in range(2):
            for r in range(4):
                a(f"v_cos_f32 v{TWC+4*mt+r}, v12\nv_sin_f32 v{TWS+4*mt+r}, v12")
                if r < 3: a("v_add_f32 v12, v12, v13")
                elif mt == 0: a(f"v_fmamk_f32 v12, v13, {f32(13.0)}, v12")
    def cs2():
        a(f"v_mul_f32 v12, {f32(1/32)}, v10\nv_mul_f32 v13, {f32(1/32)}, v11")
        for r in range(4):
            a(f"v_cos_f32 v{100+r}, v12\nv_sin_f32 v{104+r}, v12")
            if r < 3: a("v_add_f32 v12, v12, v13")
        for i in range(4): a(f"v_cvt_pk_bf16_f32 v{CS2+i}, v{100+2*i}, v{101+2*i}")
        for i in range(4): a(f"v_xor_b32 v{CS2+4+i}, v{CS2+i}, v14")
        for i in range(8): a(f"v_xor_b32 v{CS2+8+i}, 0x80000000, v{CS2+i}")
    chunks = [c0chunk, cs1, tw, cs2]
    for f in chunks[:cfg.npb]: f()
    chunks = chunks[cfg.npb:]
    if cfg.bi: a("s_barrier")
    if cfg.hpos == 3: hloads()
    a("s_waitcnt lgkmcnt(0)")
    stamp(2)
    a("s_barrier")
    lg = Lgkm(a)
    tk = []
    for ks in range(8):
        lg.issue(f"ds_read_b64_tr_b16 {vr(BD+4*ks,2)}, v3 offset:{1024*ks}")
        tk.append(lg.issue(f"ds_read_b64_tr_b16 {vr(BD+4*ks+2,2)}, v3 offset:{1024*ks+256}"))
    if cfg.hpos == 0: hloads()
    if cfg.ppos == 5: vm.issue(f"global_load_dword v254, v{rP}, s[52:53] nt")
    for ks in range(8):
        lg.wait(tk[ks])
        a(f"v_mfma_f32_32x32x16_bf16 {vr(A1,16)}, {vr(C1+4*ks,4)}, {vr(BD+4*ks,4)}, {vr(A1,16) if ks else 0}")
        if ks < 4:
            for i in range(4): a(f"v_xor_b32 v{C1+16+4*ks+i}, v{C1+4*ks+i}, v8")
    stamp(15)
    if cfg.hpos == 1: hloads()
    a(f"""
    {TAG}
    {XCC}
    s_xor_b32 s29, s27, s28
    s_mov_b32 s30, s27
    s_mov_b32 s31, s27
    v_mov_b32 v{rFV}, s29
    v_mov_b32 v{rGV}, s27
    """)
    for j in range(4):
        for b in range(2):
            a(f"v_cvt_pk_bf16_f32 v{BD+2*j+b}, v{A1+4*j+2*b}, v{A1+4*j+2*b+1}")
            if cfg.zdef:
                if j or b: a(f"v_add_u32 v{16+2*j+b}, {0x8000*(4*j+b)}, v{rZS}")
                else: a(f"v_mov_b32 v16, v{rZS}")
                continue
            tZ = vm.issue(f"global_store_dword v{rZS}, v{BD+2*j+b}, s[22:23] sc1")
            if not (j == 3 and b == 1):
                a(f"v_add_u32 v{rZS}, {0x8000 if b == 0 else 0x18000}, v{rZS}")
    if cfg.hpos == 2: hloads()
    if cfg.ppos == 2: vm.issue(f"global_load_dword v254, v{rP}, s[52:53] nt")
    stamp(3)
    a(".sec aux2 jump")
    for f in chunks[:cfg.npre]: f()
    def lzflag():
        a("s_mov_b64 exec, 1")
        vm.wait(tZ)
        vm.issue(f"global_store_dword v{rFS}, v{rFV}, s[46:47] offset:{CF_Z}")
        a("s_mov_b64 exec, -1")
        stamp(12)
    if cfg.lzpos == 3: lzflag()
    vm.wait(st["h"])
    stamp(4)
    if cfg.lzpos == 1: lzflag()
    for ch in range(2):
        d, e = HD + 4*ch, HE + 2*ch
        w = [e, e+1, d, d+1, d+2, d+3]
        t = T + 12*ch
        o = HC + 32 + ch*HCH
        a(f"ds_write_b128 v{rH}, {vr(d,4)} offset:{o}")
        for i in range(2): a(f"v_mov_b32_dpp v{e+i}, v{d+2+i} wave_shr:1 row_mask:0xf bank_mask:0xf")
        for i in range(4): a(f"v_alignbyte_b32 v{t+i}, v{w[i+2]}, v{w[i+1]}, 2")
        a(f"ds_write_b128 v{rH}, {vr(t,4)} offset:{o+HCS}")
        for i in range(4): a(f"v_mov_b32 v{t+4+i}, v{w[i+1]}")
        a(f"ds_write_b128 v{rH}, {vr(t+4,4)} offset:{o+2*HCS}")
        for i in range(4): a(f"v_alignbyte_b32 v{t+8+i}, v{w[i+1]}, v{w[i]}, 2")
        a(f"ds_write_b128 v{rH}, {vr(t+8,4)} offset:{o+3*HCS}")
    if cfg.lzpos == 2: lzflag()
    a("s_waitcnt lgkmcnt(0)")
    stamp(5)
    a("s_barrier")
    if cfg.lzpos == 0 and not cfg.zdef: lzflag()
    a(f"ds_read_b32 v{rMD}, v{rMD}")
    for f in chunks[cfg.npre:cfg.npre+cfg.nmid]: f()
    if cfg.aux_prio: a(f"s_setprio {cfg.aux_prio}")
    a(f"""
    s_waitcnt lgkmcnt(0)
    """)
    if cfg.zdef:
        for i in range(8): a(f"global_store_dword v{16+i}, v{BD+i}, s[22:23] sc1")
    a(f"""
    v_cmp_ne_u32 vcc, 0, v{rMD}
    s_cbranch_vccnz L_auxslow
    """)
    NZ = 8 if cfg.xrot else 2
    if cfg.zfs == 2: ZP_ = f"s_load_dwordx{NZ} s[8:{7+NZ}], s[54:55], 0 glc\n"
    else: ZP_ = "".join(f"s_load_dword s{8+i}, s[54:55], s{16+i} glc\n" for i in range(NZ))
    ZC_ = "".join(f"s_cmp_eq_u64 s[{8+2*i}:{9+2*i}], s[30:31]\n" + ("s_cbranch_scc0 L_znot\n" if i < NZ//2 - 1 else "s_cbranch_scc1 L_zok\nL_znot:\n") for i in range(NZ//2))
    def side(fl, off, tg):
        q = ""
        for n in range(8):
            q += f"s_mov_b32 m0, {XT+1024*n}\n" + (f"v_add_u32 v{rQ}, 8192, v{rQ}\n" if n else "s_nop 0\n") + f"global_load_lds_dwordx4 v{rQ}, s[4:5]\n"
        LZ = f"global_load_dwordx2 {vr(rLP,2)}, v{rLZ}, s[46:47] offset:{off+CF_Z} sc1"
        CL = f"""
        global_store_dwordx4 v{rCL}, {vr(rSE,4)}, s[52:53] {fl}
        global_store_dwordx4 v{rCL+1}, {vr(rSE,4)}, s[52:53] {fl}
        """
        if cfg.lead2:
            cl = f"s_lshl_b32 s40, s26, {LSB+9}\nv_subrev_u32 v{rCL}, s40, v{rCL}\n"
            for n in range(8):
                cl += f"global_store_dwordx4 v{rCL}, {vr(rSE,4)}, s[52:53] {fl}\n" + (f"v_add_u32 v{rCL}, {256 << LSB}, v{rCL}\n" if n < 7 else "")
            return f"""
        s_cmp_lg_u32 s26, s32
        s_cbranch_scc1 L_nolead{tg}
        {LZ}
        s_barrier
        L_lzpoll{tg}:
        s_waitcnt vmcnt(0)
        v_cmp_ne_u32 vcc, s29, v{rLP}
        v_cmp_ne_u32 s[40:41], s29, v{rLP+1}
        s_or_b64 vcc, vcc, s[40:41]
        s_cbranch_scc0 L_lzok{tg}
        {LZ}
        {BOUND}
        s_branch L_lzpoll{tg}
        L_lzok{tg}:
        s_bfm_b64 exec, {8*cfg.gzr}, 0
        global_store_dword v{rGZ}, v{rGV}, s[22:23] sc1
        s_mov_b64 exec, -1
        {"s_memrealtime s[72:73]" if cfg.stamps else ""}
        {cl}
        {q}
        {ZP_}
        v_and_b32 v{rFS}, 127, v{rFS}
        v_mov_b32 v{rMD}, {FL+16}
        s_waitcnt vmcnt(8)
        ds_write_b32 v{rMD}, v{rONE}
        s_mov_b64 exec, 1
        global_store_dword v{rFS}, v{rFV}, s[46:47] offset:{off+CF_Y} {fl}
        s_mov_b64 exec, -1
        s_branch L_cleared{tg}
        L_nolead{tg}:
        s_barrier
        {ZP_}
        L_cleared{tg}:
        """
        if cfg.zdef: return f"""
        s_barrier
        {CL}
        s_mov_b64 exec, 1
        s_waitcnt vmcnt(2)
        global_store_dword v{rFS}, v{rFV}, s[46:47] offset:{off+CF_Z} {fl}
        {"s_memrealtime s[84:85]" if cfg.stamps else ""}
        s_waitcnt vmcnt(1)
        global_store_dword v{rFS}, v{rFV}, s[46:47] offset:{off+CF_Y} {fl}
        ds_write_b32 v{rLF}, v{rONE} offset:16
        s_mov_b64 exec, -1
        s_cmp_lg_u32 s26, s32
        s_cbranch_scc1 L_cleared{tg}
        L_lzpoll{tg}:
        {LZ}
        {BOUND}
        s_waitcnt vmcnt(0)
        v_cmp_ne_u32 vcc, s29, v{rLP}
        v_cmp_ne_u32 s[40:41], s29, v{rLP+1}
        s_or_b64 vcc, vcc, s[40:41]
        s_cbranch_scc1 L_lzpoll{tg}
        s_bfm_b64 exec, {8*cfg.gzr}, 0
        global_store_dword v{rGZ}, v{rGV}, s[22:23] sc1
        s_mov_b64 exec, -1
        {"s_memrealtime s[72:73]" if cfg.stamps else ""}
        {q}
        L_cleared{tg}:
        {ZP_}
        """
        return f"""
        s_cmp_lg_u32 s26, s32
        s_cbranch_scc1 L_nolead{tg}
        {LZ}
        s_barrier
        {CL}
        s_waitcnt vmcnt(2)
        L_lzpoll{tg}:
        v_cmp_ne_u32 vcc, s29, v{rLP}
        v_cmp_ne_u32 s[40:41], s29, v{rLP+1}
        s_or_b64 vcc, vcc, s[40:41]
        s_cbranch_scc0 L_lzok{tg}
        {LZ}
        {BOUND}
        s_waitcnt vmcnt(0)
        s_branch L_lzpoll{tg}
        L_lzok{tg}:
        s_bfm_b64 exec, {8*cfg.gzr}, 0
        global_store_dword v{rGZ}, v{rGV}, s[22:23] sc1
        s_mov_b64 exec, -1
        {"s_memrealtime s[72:73]" if cfg.stamps else ""}
        {"" if cfg.noq else q}
        s_waitcnt vmcnt({1 if cfg.noq else 9})
        s_branch L_cleared{tg}
        L_nolead{tg}:
        s_barrier
        {CL}
        s_waitcnt vmcnt(0)
        L_cleared{tg}:
        {ZP_}
        ds_write_b32 v{rLF}, v{rONE} offset:16
        s_mov_b64 exec, 1
        global_store_dword v{rFS}, v{rFV}, s[46:47] offset:{off+CF_Y} {fl}
        s_mov_b64 exec, -1
        """
    stamp(6); extra.add(('f', 12))
    a(side("", 0, "f"))
    a("L_auxjoin:")
    slow_stubs.append(f"""
    L_auxslow:
    s_mov_b32 s29, s27
    v_mov_b32 v{rFV}, s27
    s_add_u32 s52, s22, {KVS}
    s_addc_u32 s53, s23, 0
    s_mov_b64 exec, 1
    {"" if cfg.zdef else f"global_store_dword v{rFS}, v{rFV}, s[46:47] offset:{CF_SLOW+CF_Z} sc1"}
    s_mov_b64 exec, -1
    {side("sc1", CF_SLOW, "s")}
    s_branch L_auxjoin
    """)
    stamp(13)
    for f in chunks[cfg.npre+cfg.nmid:]: f()
    QF_ = f"ds_write_b32 v{rLF}, v{rONE} offset:32"
    a(f"""
    {"s_waitcnt vmcnt(0)" if cfg.nofnet2 else ""}
    {QF_ if cfg.nofnet2 else ""}
    {"s_endpgm" if cfg.nofnet2 else ""}
    L_zpoll:
    s_waitcnt lgkmcnt(0)
    {ZC_}
    {ZP_}
    {BOUND}
    s_add_u32 s33, s33, 1
    s_cmp_lt_u32 s33, 3
    s_cbranch_scc1 L_zpoll
    s_waitcnt vmcnt(0)
    {QF_}
    s_branch L_zpoll
    L_zok:
    """)
    stamp(7)
    ZD, A0, ZP = 48, 128, 80
    ZA, G = 48, 128
    if cfg.zx4:
        for L_ in range(2):
            for i in range(4):
                a(f"global_load_dwordx4 {vr(ZD+16*L_+4*i,4)}, v{rZA}, s[22:23] offset:{4096*L_+128*i-4096} {cfg.zld}")
        a(f"s_waitcnt vmcnt(8)\n{QF_}")
        if cfg.aux_prio and cfg.aux_drop == 1: a("s_setprio 0")
        stamp(14)
        if 'z' in cfg.hack: a("s_endpgm")
        def cvx(L_):
            for b in range(2):
                for e in range(4):
                    r = A0 + 16*L_ + 4*e + 2*b
                    a(f"v_cvt_pk_bf16_f32 v{ZP+4*(2*L_+b)+e}, v{r}, v{r+1}")
                a(f"ds_write_b128 v{rZW}, {vr(ZP+4*(2*L_+b),4)} offset:{2304*b+256*L_}")
        for L_ in range(2):
            a(f"s_waitcnt vmcnt({4-4*L_})")
            for e in range(4):
                for i in range(e + 1, 4): a(f"v_swap_b32 v{ZD+16*L_+4*i+e}, v{ZD+16*L_+4*e+i}")
            if cfg.gate0: continue
            for e in range(4):
                a(f"v_mfma_f32_16x16x32_bf16 {vr(A0+16*L_+4*e,4)}, {vr(C0,4)}, {vr(ZD+16*L_+4*e,4)}, 0")
        if cfg.gate0:
            a(f"""
            L_gw:
            ds_read_b32 v8, v{rLF} offset:64
            {BOUND}
            s_waitcnt lgkmcnt(0)
            v_cmp_ne_u32 vcc, 1, v8
            s_cbranch_vccnz L_gw
            {f"s_setprio {cfg.prio2}" if cfg.prio2 else ""}
            """)
            for L_ in range(2):
                for e in range(4):
                    a(f"v_mfma_f32_16x16x32_bf16 {vr(A0+16*L_+4*e,4)}, {vr(C0,4)}, {vr(ZD+16*L_+4*e,4)}, 0")
        stamp(8)
        if 's' in cfg.hack: a("s_endpgm")
        cvx(0); cvx(1)
        a(f"ds_write_b32 v{rLF}, v{rONE} offset:48\ns_or_b32 s42, s2, s26")
        if cfg.aux_prio and cfg.aux_drop == 2: a("s_setprio 0")
        a(f"L_zl:\nds_read_b32 v8, v{rZF}")
        for row in range(2):
            for mt in range(2):
                for hh in range(2):
                    a(f"ds_read2_b32 {vr(ZA+8*row+4*mt+2*hh,2)}, v{(rZR, rZR2)[row]} offset0:{16*mt+64*hh} offset1:{16*mt+64*hh+32}")
        a(f"""
        s_waitcnt lgkmcnt(8)
        v_cmp_ne_u32 vcc, 1, v8
        s_cbranch_vccz L_zlok
        L_zlw:
        {BOUND}
        {f"s_sleep {cfg.zlsleep}" if cfg.zlsleep else ""}
        {f"ds_read_b32 v8, v{rZF}" if cfg.zlite else ""}
        s_waitcnt lgkmcnt(0)
        {"v_cmp_ne_u32 vcc, 1, v8" if cfg.zlite else ""}
        {"s_cbranch_vccnz L_zlw" if cfg.zlite else ""}
        s_branch L_zl
        L_zlok:
        """)
        stamp(9)
        n = 0
        for row in range(2):
            for mt in range(2):
                n += 1
                a(f"s_waitcnt lgkmcnt({8-2*n})")
                for c in range(2):
                    a(f"v_mfma_f32_16x16x32_bf16 {vr(G+16*row+8*mt+4*c,4)}, {vr(ZA+8*row+4*mt,4)}, {vr(CS1+4*c,4)}, 0")
    else:
        ZD, A0, ZP = 48, 128, 80
        for dl in range(4):
            for hf in range(2):
                for i in range(4):
                    a(f"global_load_dword v{ZD+8*dl+4*hf+i}, v{rZA}, s[22:23] offset:{2048*dl+1024*hf+(128 if cfg.z32 else 256)*i-4096} {cfg.zld}")
        a(f"s_waitcnt vmcnt(32)\n{QF_}")
        if cfg.aux_prio and cfg.aux_drop: a("s_setprio 0")
        stamp(14)
        def cv(dl, hf):
            for b in range(2):
                r = A0 + (16 if cfg.z32 else 8)*dl + 4*hf + 2*b
                a(f"v_cvt_pk_bf16_f32 v{ZP+4*(2*hf+b)+dl}, v{r}, v{r+1}")
        for dl in range(4):
            for hf in range(2):
                a(f"s_waitcnt vmcnt({32-8*dl-4*hf-4})")
                if cfg.z32:
                    d = vr(A0+16*dl, 16)
                    a(f"v_mfma_f32_32x32x16_bf16 {d}, {vr(C0+4*hf,4)}, {vr(ZD+8*dl+4*hf,4)}, {d if hf else 0}")
                else:
                    a(f"v_mfma_f32_16x16x32_bf16 {vr(A0+8*dl+4*hf,4)}, {vr(C0,4)}, {vr(ZD+8*dl+4*hf,4)}, 0")
        stamp(8)
        for dl in range(4):
            for hf in range(2): cv(dl, hf)
        for hf in range(2):
            for b in range(2):
                a(f"ds_write_b128 v{rZW}, {vr(ZP+4*(2*hf+b),4)} offset:{2048*b+(8192 if cfg.z32 else 256)*hf}")
        ZA, G = 48, 128
        a(f"ds_write_b32 v{rLF}, v{rONE} offset:48\ns_or_b32 s42, s2, s26\nL_zl:\nds_read_b32 v8, v{rZF}")
        for row in range(2):
            for mt in range(2):
                a(f"ds_read_b128 {vr(ZA+8*row+4*mt,4)}, v{rZR} offset:{2048*row+256*mt}")
        a(f"""
        s_waitcnt lgkmcnt(4)
        v_cmp_ne_u32 vcc, 1, v8
        s_cbranch_vccz L_zlok
        {BOUND}
        s_waitcnt lgkmcnt(0)
        {f"s_sleep {cfg.zlsleep}" if cfg.zlsleep else ""}
        s_branch L_zl
        L_zlok:
        """)
        stamp(9)
        n = 0
        for row in range(2):
            for mt in range(2):
                n += 1
                a(f"s_waitcnt lgkmcnt({4-n})")
                for c in range(2):
                    a(f"v_mfma_f32_16x16x32_bf16 {vr(G+16*row+8*mt+4*c,4)}, {vr(ZA+8*row+4*mt,4)}, {vr(CS1+4*c,4)}, 0")

    GP, TM, YO = 64, 96, 160
    def fin(row):
        for nt in range(2):
            y = YO+8*row+4*nt
            a(f"v_cvt_pk_bf16_f32 v{y}, v{y}, v{y+1}\nv_cvt_pk_bf16_f32 v{y+1}, v{y+2}, v{y+3}")
            if 'f' not in cfg.hack: a(f"global_store_dwordx2 v{rO+row}, {vr(y,2)}, s[20:21] offset:{1024+512*nt} {cfg.fout_flag}")
    for row in range(2):
        for mt in range(2):
            re, im = G+16*row+8*mt, G+16*row+8*mt+4
            if cfg.nopk:
                for r in range(4):
                    t0, t1 = TM+4*(r >> 1)+(r & 1), TM+4*(r >> 1)+2+(r & 1)
                    a(f"v_mul_f32 v{t0}, v{re+r}, v{TWC+4*mt+r}\nv_mul_f32 v{t1}, v{im+r}, v{TWC+4*mt+r}")
                for r in range(4):
                    t0, t1 = TM+4*(r >> 1)+(r & 1), TM+4*(r >> 1)+2+(r & 1)
                    a(f"v_fmac_f32 v{t0}, v{im+r}, v{TWS+4*mt+r}\nv_fma_f32 v{t1}, -v{re+r}, v{TWS+4*mt+r}, v{t1}")
            else:
                for h in range(2):
                    tc = vr(TWC+4*mt+2*h, 2)
                    a(f"v_pk_mul_f32 {vr(TM+4*h,2)}, {vr(re+2*h,2)}, {tc}")
                    a(f"v_pk_mul_f32 {vr(TM+4*h+2,2)}, {vr(im+2*h,2)}, {tc}")
                for h in range(2):
                    ts = vr(TWS+4*mt+2*h, 2)
                    a(f"v_pk_fma_f32 {vr(TM+4*h,2)}, {vr(im+2*h,2)}, {ts}, {vr(TM+4*h,2)}")
                    a(f"v_pk_fma_f32 {vr(TM+4*h+2,2)}, {vr(re+2*h,2)}, {ts}, {vr(TM+4*h+2,2)} neg_lo:[1,0,0] neg_hi:[1,0,0]")
            p = GP + 8*row + 4*mt
            for h in range(2):
                a(f"v_cvt_pk_bf16_f32 v{p+h}, v{TM+4*h}, v{TM+4*h+1}")
                a(f"v_cvt_pk_bf16_f32 v{p+2+h}, v{TM+4*h+2}, v{TM+4*h+3}")
            if (row, mt) == (1, 0): fin(0)
            for nt in range(2):
                d = vr(YO+8*row+4*nt, 4)
                a(f"v_mfma_f32_16x16x32_bf16 {d}, {vr(p,4)}, {vr(CS2+8*nt+4*mt,4)}, {d if mt else 0}")
    a(f"""
    s_cmp_lg_u32 s42, 0
    s_cbranch_scc1 L_noepoch
    v_mov_b32 v7, 0
    s_mov_b64 exec, 1
    global_store_dword v7, v{rGV}, s[44:45]
    s_mov_b64 exec, -1
    L_noepoch:
    s_nop 5
    """)
    fin(1)
    stamp_out(10)
    a("L_exit:\ns_endpgm")
    for x in slow_stubs: a(x)
    slow_stubs.clear()
    a(f"""
    .sec kvslow
    L_kvretry:
    global_load_dword v34, v11, s[46:47] offset:{CF_KV} sc1
    s_add_u32 s52, s52, 1
    s_waitcnt vmcnt(0)
    v_cmp_ne_u32 vcc, s29, v34
    s_cbranch_vccz L_kvok
    s_cmp_gt_u32 s52, {cfg.timeout}
    s_cbranch_scc0 L_kvretry
    s_branch L_kvcheck
    L_kvcheck:
    {BOUND}
    s_xor_b32 s55, s27, 0x5bd1e995
    v_mov_b32 v36, s55
    v_mov_b32 v37, s29
    s_lshl_b32 s40, s25, 3
    v_mov_b32 v38, s40
    s_mov_b64 exec, 1
    global_store_dwordx2 v38, v[36:37], s[46:47] offset:{CF_HELLO} sc1
    s_mov_b64 exec, -1
    v_lshlrev_b32 v38, 1, v11
    global_load_dwordx2 v[36:37], v38, s[46:47] offset:{CF_HELLO} sc1
    s_waitcnt vmcnt(0)
    v_cmp_eq_u32 s[56:57], s55, v36
    v_cmp_ne_u32 vcc, s29, v37
    s_and_b64 s[56:57], s[56:57], vcc
    v_xor_b32 v37, s27, v37
    v_cmp_gt_u32 vcc, 16, v37
    s_and_b64 s[56:57], s[56:57], vcc
    s_cbranch_scc1 L_goslow
    s_sleep 8
    s_branch L_kvretry
    L_goslow:
    s_mov_b32 s53, 1
    s_mov_b32 s29, s27
    v_mov_b32 v33, s27
    v_mov_b32 v36, {FL+80}
    ds_write_b32 v36, v35
    s_add_u32 s36, s22, {KVS}
    s_addc_u32 s37, s23, 0
    s_add_u32 s38, s22, {DUMMY}
    s_addc_u32 s39, s23, 0
    global_store_dwordx4 v9, {vr(KVP,4)}, s[36:37] sc1
    global_store_dwordx4 v29, {vr(KVP+4,4)}, s[36:37] sc1
    s_lshl2_add_u32 s40, s25, s26
    s_lshl_b32 s40, s40, 2
    v_mov_b32 v36, s40
    v_lshlrev_b32 v37, 3, v2
    s_waitcnt vmcnt(0) lgkmcnt(0)
    s_mov_b64 exec, 1
    global_store_dword v36, v33, s[46:47] offset:{CF_SLOW+CF_KV} sc1
    s_mov_b64 exec, -1
    L_kvslowpoll:
    global_load_dwordx2 v[38:39], v37, s[46:47] offset:{CF_SLOW+CF_KV} sc1
    s_waitcnt vmcnt(0)
    v_cmp_ne_u32 vcc, s29, v38
    v_cmp_ne_u32 s[56:57], s29, v39
    s_or_b64 vcc, vcc, s[56:57]
    s_cbranch_scc0 L_kvok
    {BOUND}
    s_sleep 8
    s_branch L_kvslowpoll
    """)
    secs, cur = {"entry": []}, "entry"
    for line in a.text().split("\n"):
        if line.startswith(".sec"):
            p = line.split()
            if len(p) > 2: secs[cur].append(f"    s_branch L_sec_{p[1]}")
            cur = p[1]; secs[cur] = [f"L_sec_{cur}:"]
        else: secs[cur].append(line)
    pages = {0: [["entry", "conv2", "varA", "varB", "aux1", "aux2", "kvslow"]],
             1: [["entry", "aux1"], ["conv2", "kvslow"], ["varA"], ["varB"], ["aux2"]],
             2: [["entry", "conv2", "varA", "varB", "aux1", "aux2", "kvslow"]],
             3: [["entry", "conv2", "kvslow"], ["varA"], ["varB"], ["aux1", "aux2"]],
             4: [["entry", "aux1"], ["conv2", "aux2"], ["varA"], ["varB", "kvslow"]],
             5: [["entry", "aux1", "conv2", "aux2", "varA", "varB", "kvslow"]],
            }[cfg.layout]
    body = ".p2align 12\n".join("\n".join(l for n in pg for l in secs[n]) + "\n" for pg in pages) + "L_code_end:\n"
    hdr = open("concat_heads__ssm_conv_h3__spectral_fnet__prompt.s.ref").read().split("; Override")[0]
    txt = hdr + f"; @launch grid=(256,1,1) block=(512,1,1) lds={LDS_BYTES}\n"
    txt += f""".amdgcn_target "amdgcn-amd-amdhsa--gfx950"
.text
.globl {KN}
{".p2align 12" if cfg.layout else ""}
{f".fill {cfg.epad // 4}, 4, 0xbf800000" if cfg.epad else ""}
.p2align 8
.type {KN},@function
{KN}:
""" + body + f""".section .rodata,"a"
.p2align 6
.amdhsa_kernel {KN}
  .amdhsa_next_free_vgpr 256
  .amdhsa_next_free_sgpr 100
  .amdhsa_accum_offset 256
  .amdhsa_group_segment_fixed_size 0
  .amdhsa_kernarg_size 112
  .amdhsa_user_sgpr_count 2
  .amdhsa_user_sgpr_kernarg_segment_ptr 1
  .amdhsa_system_sgpr_workgroup_id_x 1
  .amdhsa_float_denorm_mode_32 3
.end_amdhsa_kernel
"""
    return txt, a

if __name__ == "__main__":
    cfg = Cfg()
    out = sys.argv[1]
    for kv in sys.argv[2:]:
        k, v = kv.split("=")
        cur = getattr(cfg, k)
        setattr(cfg, k, (v == "1") if isinstance(cur, bool) else type(cur)(v))
    txt, a = gen(cfg)
    bad = check_inflight(a)
    for b in bad: print("INFLIGHT:", b)
    assert not bad
    open(out, "w").write(txt)
    print("instructions:", sum(1 for i in a.ins if not (i.label or i.directive)), "pad states:", a.pads)
```
